```python
import torch

def _softmax(x, axis=-1):
    return torch.softmax(x, dim=axis)
def _gelu(x):
    return torch.nn.functional.gelu(x, approximate="tanh")
def _silu(x):
    return torch.nn.functional.silu(x)
def _sigmoid(x):
    return torch.sigmoid(x)
def _layernorm(x, axis=-1, eps=1e-5):
    m = x.mean(dim=axis, keepdim=True)
    v = x.var(dim=axis, keepdim=True, unbiased=False)
    return (x - m) / torch.sqrt(v + eps)
def _scatter_add(tgt, idx, src, axis=0):
    return tgt.clone().index_add_(axis, idx, src)
def _segment_sum(src, seg, n):
    out = torch.zeros((n,) + src.shape[1:], dtype=src.dtype)
    return out.index_add_(0, seg, src)
def _pad(x, pw):
    flat = tuple(v for pair in reversed(pw) for v in pair)
    return torch.nn.functional.pad(x, flat)

kernel_name = 'gather_scatter__edge_featured_mpnn_egc__graph'

def setup_inputs():

    _w = (lambda a: (lambda t: t.to(torch.bfloat16) if t.is_floating_point() else t)(torch.as_tensor(a)))
    N, deg, D, De = 12500, 64, 64, max(0, 1)
    E = N * deg
    return {
        "x": _w((lambda *s: torch.randn(*s, dtype=torch.bfloat16) * 0.2)(N, D)),
        "e_attr": _w((lambda *s: torch.randn(*s, dtype=torch.bfloat16) * 0.2)(E, De)),
        "src": _w((lambda lo, hi, *s: torch.randint(lo, hi, s))(0, N, E).to(torch.int64)),
        "dst": _w((lambda lo, hi, *s: torch.randint(lo, hi, s))(0, N, E).to(torch.int64)),
        "u_w": _w((lambda *s: torch.randn(*s, dtype=torch.bfloat16) * 0.05)(D, D)),
        "v_w": _w((lambda *s: torch.randn(*s, dtype=torch.bfloat16) * 0.05)(D, D)),
        "g_w": _w((lambda *s: torch.randn(*s, dtype=torch.bfloat16) * 0.2)(2 * D + De, D)),
    }

def reference(x, e_attr, src, dst, u_w, v_w, g_w):
    N, D = x.shape
    g_in = torch.concatenate([x[dst], x[src], e_attr], axis=-1)
    eta = _sigmoid(g_in @ g_w)
    hv = x @ v_w
    msg = eta * hv[src]
    agg = _segment_sum(msg, dst, N)
    return _silu(x @ u_w + agg)
```

```python
import sys, struct

N=12500; E=800000; NB=49; NBK=256; C=250; CH=3200
TAB_OFF=0; P_OFF=0x400000; U_OFF=0x800000; REC_OFF=0xC00000; CELL_OFF=0x1400000; FLG_OFF=0x1500000; WS_SZ=0x1600000
NTWG=98
LOG2E=1.4426950408889634
def f32(x): return struct.unpack('<I',struct.pack('<f',x))[0]
NEG_LOG2E=f32(-LOG2E)

out=[]
def I(s): out.append("    "+s)
def L(s): out.append(s+":")
def Cm(s): out.append("    ; "+s)
def vr(a,n=1): return f"v{a}" if n==1 else f"v[{a}:{a+n-1}]"
def sr(a,n=1): return f"s{a}" if n==1 else f"s[{a}:{a+n-1}]"

def srd(d, plo, phi, size, add=0, stride=0):
    if add:
        I(f"s_add_u32 s{d}, s{plo}, {hex(add)}")
        I(f"s_addc_u32 s{d+1}, s{phi}, 0")
    else:
        I(f"s_mov_b32 s{d}, s{plo}")
        I(f"s_mov_b32 s{d+1}, s{phi}")
    I(f"s_and_b32 s{d+1}, s{d+1}, 0xffff")
    if stride:
        I(f"s_or_b32 s{d+1}, s{d+1}, {hex(stride<<16)}")
    I(f"s_mov_b32 s{d+2}, {hex(size)}")
    I(f"s_mov_b32 s{d+3}, 0x20000")

def wave_scan(x):
    for sh in (1,2,4,8):
        I("s_nop 1")
        I(f"v_add_u32_dpp v{x}, v{x}, v{x} row_shr:{sh} row_mask:0xf bank_mask:0xf")
    I("s_nop 1")
    I(f"v_add_u32_dpp v{x}, v{x}, v{x} row_bcast:15 row_mask:0xa bank_mask:0xf")
    I("s_nop 1")
    I(f"v_add_u32_dpp v{x}, v{x}, v{x} row_bcast:31 row_mask:0xc bank_mask:0xf")
    I("s_nop 1")

hdr=open('gather_scatter__edge_featured_mpnn_egc__graph.s.ref').read().splitlines()
for l in hdr:
    if l.startswith(';') and '@launch' not in l and 'Override' not in l and 'grid=ceil' not in l:
        out.append(l)
K1_LDS=32768
K2_LDS=125184
out.append(f"; @launch kernel=egc_bin_kernel grid=({C+NTWG},1,1) block=(512,1,1) lds={K1_LDS}")
out.append(f"; @launch kernel=egc_main_kernel grid=({NBK},1,1) block=(1024,1,1) lds={K2_LDS}")
out.append('.amdgcn_target "amdgcn-amd-amdhsa--gfx950"')
out.append('.text')

out.append('.globl egc_bin_kernel'); out.append('.p2align 8'); out.append('.type egc_bin_kernel,@function')
L('egc_bin_kernel')
I("s_load_dwordx16 s[4:19], s[0:1], 0")
I("s_load_dwordx2 s[20:21], s[0:1], 72")
I(f"s_cmp_ge_u32 s2, {C+NTWG}")
I("s_cbranch_scc1 K1_END")
I("v_lshrrev_b32 v1, 6, v0")
I("v_and_b32 v2, 63, v0")
I("s_nop 0")
I("v_readfirstlane_b32 s3, v1")
I(f"s_cmp_ge_u32 s2, {C}")
I("s_cbranch_scc1 K1_TABLE")
HIST=0; OFFT=1024; RECL=2048
I("s_cmp_ge_u32 s3, 7")
I("s_cbranch_scc1 K1_END")
I("s_waitcnt lgkmcnt(0)")
srd(24, 10,11, E*4)
srd(28, 8,9, E*4)
srd(32, 6,7, E*2)
srd(36, 20,21, WS_SZ)
I("s_mul_i32 s40, s2, 12800")
I("s_add_u32 s41, s40, 6400")
I("s_mul_i32 s42, s2, 6400")
I("s_add_u32 s43, s42, 3200")
I("v_lshlrev_b32 v3, 4, v0")
I("v_lshlrev_b32 v4, 3, v0")
I("v_cmp_gt_u32 vcc, 400, v0")
I("s_mov_b64 s[44:45], vcc")
I("s_mov_b64 exec, vcc")
DST=8; SRC=16; EA=24; BK=32; RK=40; W1=48
I(f"buffer_load_dwordx4 v[{DST}:{DST+3}], v3, s[24:27], s40 offen")
I(f"buffer_load_dwordx4 v[{DST+4}:{DST+7}], v3, s[24:27], s41 offen")
I(f"buffer_load_dwordx4 v[{SRC}:{SRC+3}], v3, s[28:31], s40 offen")
I(f"buffer_load_dwordx4 v[{SRC+4}:{SRC+7}], v3, s[28:31], s41 offen")
I(f"buffer_load_dwordx2 v[{EA}:{EA+1}], v4, s[32:35], s42 offen")
I(f"buffer_load_dwordx2 v[{EA+2}:{EA+3}], v4, s[32:35], s43 offen")
I("v_mov_b32 v5, 0")
I("v_lshlrev_b32 v6, 2, v0")
I("v_cmp_gt_u32 vcc, 256, v0")
I("s_mov_b64 exec, vcc")
I(f"ds_write_b32 v6, v5 offset:{HIST}")
I("s_mov_b64 exec, s[44:45]")
I("v_mov_b32 v7, 1")
I("s_mov_b32 s46, -196")
I("s_mov_b32 s47, 0xffff0000")
I("s_waitcnt lgkmcnt(0)")
I("s_barrier")
I("s_waitcnt vmcnt(4)")
for k in range(8):
    I(f"v_mul_u32_u24 v5, 21400, v{DST+k}")
    I(f"v_lshrrev_b32 v5, 20, v5")
    I(f"v_lshlrev_b32 v{BK+k}, 2, v5")
    I(f"v_lshlrev_b32 v6, 2, v{DST+k}")
    I(f"v_mad_i32_i24 v{W1+k}, v5, s46, v6")
    I(f"ds_add_rtn_u32 v{RK+k}, v{BK+k}, v7 offset:{HIST}")
I("s_waitcnt vmcnt(0)")
for k in range(8):
    ed=EA+k//2
    if k%2==0: I(f"v_lshl_or_b32 v{W1+k}, v{ed}, 16, v{W1+k}")
    else:      I(f"v_and_or_b32 v{W1+k}, v{ed}, s47, v{W1+k}")
I("s_waitcnt lgkmcnt(0)")
I("s_barrier")
I("s_mov_b64 exec, -1")
I("v_lshlrev_b32 v5, 4, v2")
I(f"ds_read_b128 v[56:59], v5 offset:{HIST}")
I("s_waitcnt lgkmcnt(0)")
I("v_add_u32 v60, v56, v57")
I("v_add_u32 v61, v60, v58")
I("v_add_u32 v62, v61, v59")
I("v_mov_b32 v63, v62")
wave_scan(63)
I("v_sub_u32 v64, v63, v62")
I("v_add_u32 v65, v64, v56")
I("v_add_u32 v66, v64, v60")
I("v_add_u32 v67, v64, v61")
I(f"ds_write_b128 v5, v[64:67] offset:{OFFT}")
I("s_cmp_lg_u32 s3, 0")
I("s_cbranch_scc1 K1_NOCELL")
I("v_lshlrev_b32 v6, 12, v2")
I("s_lshl_b32 s48, s2, 2")
I(f"s_add_u32 s48, s48, {hex(CELL_OFF)}")
for i in range(4):
    I(f"v_lshl_or_b32 v{68+i}, v{56+i}, 16, v{64+i}")
for i in range(4):
    I(f"buffer_store_dword v{68+i}, v6, s[36:39], s48 offen offset:{1024*i}")
L("K1_NOCELL")
I("s_mov_b64 exec, s[44:45]")
I("s_waitcnt lgkmcnt(0)")
for k in range(8):
    I(f"ds_read_b32 v{BK+k}, v{BK+k} offset:{OFFT}")
for k in range(8):
    I(f"s_waitcnt lgkmcnt({7-k})")
    I(f"v_add_lshl_u32 v{BK+k}, v{BK+k}, v{RK+k}, 3")
    I(f"v_add_u32 v{BK+k}, {RECL}, v{BK+k}")
for k in range(8):
    I(f"ds_write2_b32 v{BK+k}, v{SRC+k}, v{W1+k} offset0:0 offset1:1")
I("s_waitcnt lgkmcnt(0)")
I("s_barrier")
for i in range(4):
    I(f"ds_read_b128 v[{56+4*i}:{59+4*i}], v3 offset:{RECL+6400*i}")
I("s_mul_i32 s48, s2, 25600")
I(f"s_add_u32 s48, s48, {hex(REC_OFF)}")
for i in range(4):
    I(f"s_waitcnt lgkmcnt({3-i})")
    I(f"buffer_store_dwordx4 v[{56+4*i}:{59+4*i}], v3, s[36:39], s48 offen")
    if i<3: I("s_add_u32 s48, s48, 6400")
I("s_branch K1_END")

L("K1_TABLE")
I("s_waitcnt lgkmcnt(0)")
I(f"s_sub_u32 s22, s2, {C}")
I("s_and_b32 s23, s3, 3")
I("s_lshl_b32 s22, s22, 2")
I("s_add_u32 s22, s22, s23")
I("s_lshr_b32 s23, s3, 2")
srd(24, 4,5, N*128)
I("s_lshr_b32 s40, s3, 1")
I("s_add_u32 s28, s16, 8192")
I("s_addc_u32 s29, s17, 0")
I("s_cmp_eq_u32 s40, 1")
I("s_cselect_b32 s28, s14, s28")
I("s_cselect_b32 s29, s15, s29")
I("s_cmp_eq_u32 s40, 2")
I("s_cselect_b32 s28, s16, s28")
I("s_cselect_b32 s29, s17, s29")
I("s_cmp_eq_u32 s40, 3")
I("s_cselect_b32 s28, s12, s28")
I("s_cselect_b32 s29, s13, s29")
I("s_and_b32 s29, s29, 0xffff")
I("s_mov_b32 s30, 8192")
I("s_mov_b32 s31, 0x20000")
I("v_and_b32 v3, 31, v2")
I("v_lshrrev_b32 v4, 5, v2")
I("v_lshlrev_b32 v5, 10, v4")
I("v_lshl_add_u32 v5, v3, 2, v5")
I("s_and_b32 s41, s3, 1")
I("s_lshl_b32 s42, s41, 12")
RAW=16
for ds in range(2):
    for i in range(8):
        I(f"buffer_load_dword v{RAW+ds*8+i}, v5, s[28:31], s42 offen offset:{ds*2048+i*128}")
XO=96
I("s_lshl_b32 s43, s22, 5")
I("v_add_u32 v6, s43, v3")
I("v_lshlrev_b32 v7, 7, v6")
I("v_lshl_add_u32 v7, v4, 4, v7")
for s in range(4):
    I(f"buffer_load_dwordx4 v[{XO+4*s}:{XO+4*s+3}], v7, s[24:27], 0 offen offset:{32*s}")
I("s_mov_b32 s44, 0x05040100")
I("s_mov_b32 s45, 0x07060302")
I("s_lshl_b32 s46, s40, 13")
I("s_lshl_b32 s47, s41, 11")
I("s_add_u32 s46, s46, s47")
I("v_lshlrev_b32 v8, 4, v2")
I("v_add_u32 v9, s46, v8")
I("s_waitcnt vmcnt(4)")
for ds in range(2):
    for r in range(4):
        I(f"v_perm_b32 v{32+ds*8+r}, v{RAW+ds*8+2*r+1}, v{RAW+ds*8+2*r}, s44")
        I(f"v_perm_b32 v{36+ds*8+r}, v{RAW+ds*8+2*r+1}, v{RAW+ds*8+2*r}, s45")
    I(f"ds_write_b128 v9, v[{32+ds*8}:{35+ds*8}] offset:{ds*1024}")
    I(f"ds_write_b128 v9, v[{36+ds*8}:{39+ds*8}] offset:{4096+ds*1024}")
I("s_lshl_b32 s46, s23, 14")
I("v_add_u32 v9, s46, v8")
I("s_waitcnt lgkmcnt(0)")
I("s_barrier")
ACC=16
OPS=[80,84,88,92,112,116,120,124]
I("s_waitcnt vmcnt(0)")
for mm in range(2):
    for t in range(2):
        for s in range(4):
            I(f"ds_read_b128 v[{OPS[t*4+s]}:{OPS[t*4+s]+3}], v9 offset:{((mm*2+t)*4+s)*1024}")
    for t in range(2):
        for s in range(4):
            I(f"s_waitcnt lgkmcnt({7-(t*4+s)})")
            a=ACC+(mm*2+t)*16
            cc = "0" if s==0 else f"v[{a}:{a+15}]"
            I(f"v_mfma_f32_32x32x16_bf16 v[{a}:{a+15}], v[{OPS[t*4+s]}:{OPS[t*4+s]+3}], v[{XO+4*s}:{XO+4*s+3}], {cc}")
    if mm==0:
        I("s_nop 7")
I("s_nop 15")
I("s_nop 3")
I("v_lshlrev_b32 v7, 8, v6")
I("v_lshl_add_u32 v7, v4, 5, v7")
I(f"s_mov_b32 s44, {hex(NEG_LOG2E)}")
I("s_cmp_lg_u32 s23, 0")
I("s_cbranch_scc1 K1_PU")
srd(36, 20,21, 12512*256, add=TAB_OFF)
QA,QB,VA,VB=16,32,48,64
I("s_mov_b32 s45, 0x7fffffff")
I("s_mov_b32 s46, 0x80000000")
I("s_mov_b32 s47, 0x7fff0000")
I(f"v_mov_b32 v10, {hex(0x7f7f0000)}")
I(f"v_mov_b32 v11, {hex(0xff7f0000)}")
I("v_mov_b32 v12, 0")
def fit(dst, val, g, t1, t2):
    I(f"v_med3_f32 v{val}, v{val}, v10, v11")
    I(f"v_and_b32 v{t1}, s45, v{val}")
    I(f"v_add_u32 v{t1}, 0x8000, v{t1}")
    I(f"v_sub_u32 v{t1}, v{t1}, v{g} clamp")
    I(f"v_and_or_b32 v{t2}, v{val}, s46, v{g}")
    I(f"v_bfi_b32 v{dst}, s47, v{t1}, v{t2}")
for g in range(4):
    O=80+ (g%2)*8
    for i in range(4):
        r=4*g+i
        I(f"v_max3_f32 v12, abs(v{VA+r}), abs(v{VB+r}), v12")
        I(f"v_mul_f32 v{QA+r}, s44, v{QA+r}")
        I(f"v_mul_f32 v{QB+r}, s44, v{QB+r}")
        I(f"v_cvt_pk_bf16_f32 v13, v{VA+r}, v{VA+r}")
        I(f"v_and_b32 v13, 0xffff, v13")
        fit(O+2*i, QA+r, 13, 14, 15)
        I(f"v_lshrrev_b32 v13, 16, v{O+2*i}")
        fit(112, VB+r, 13, 14, 15)
        I(f"v_lshrrev_b32 v13, 16, v112")
        fit(O+2*i+1, QB+r, 13, 14, 15)
    I(f"buffer_store_dwordx4 v[{O}:{O+3}], v7, s[36:39], 0 offen offset:{64*g}")
    I(f"buffer_store_dwordx4 v[{O+4}:{O+7}], v7, s[36:39], 0 offen offset:{64*g+16}")
I(f"v_mov_b32 v13, {hex(f32(2.0**60))}")
I("v_cmp_nlt_f32 vcc, v12, v13")
I("s_cmp_lg_u64 vcc, 0")
I("s_cselect_b32 s48, 1, 0")
srd(40, 20,21, 4096, add=FLG_OFF)
I("v_mov_b32 v13, s48")
I("s_lshl_b32 s49, s22, 2")
I("v_mov_b32 v14, s49")
I("v_cmp_eq_u32 vcc, 0, v2")
I("s_mov_b64 exec, vcc")
I("buffer_store_dword v13, v14, s[40:43], 0 offen")
I("s_branch K1_END")
L("K1_PU")
srd(36, 20,21, N*256, add=P_OFF)
srd(40, 20,21, N*256, add=U_OFF)
for g in range(4):
    O=80+(g%2)*32
    for i in range(4):
        r=4*g+i
        I(f"v_mul_f32 v{O+2*i}, s44, v{16+r}")
        I(f"v_mul_f32 v{O+2*i+1}, s44, v{32+r}")
        I(f"v_mov_b32 v{O+8+2*i}, v{48+r}")
        I(f"v_mov_b32 v{O+8+2*i+1}, v{64+r}")
    I(f"buffer_store_dwordx4 v[{O}:{O+3}], v7, s[36:39], 0 offen offset:{64*g}")
    I(f"buffer_store_dwordx4 v[{O+4}:{O+7}], v7, s[36:39], 0 offen offset:{64*g+16}")
    I(f"buffer_store_dwordx4 v[{O+8}:{O+11}], v7, s[40:43], 0 offen offset:{64*g}")
    I(f"buffer_store_dwordx4 v[{O+12}:{O+15}], v7, s[40:43], 0 offen offset:{64*g+16}")
L("K1_END")
I("s_endpgm")

CNT=0; MISC=256; QN=512; IDX=11264; EV=52224; XS=93184; RS=320; ACCO=16000; ACCB=XS+ACCO
CAP=40; NLD=5
out.append('.globl egc_main_kernel'); out.append('.p2align 8'); out.append('.type egc_main_kernel,@function')
L('egc_main_kernel')
I("s_load_dwordx4 s[4:7], s[0:1], 48")
I("s_load_dwordx2 s[8:9], s[0:1], 72")
I(f"s_cmp_ge_u32 s2, {NBK}")
I("s_cbranch_scc1 K2_END")
vLANE=1; vJ=2; vG=3; vROW=4; vCELL=5; vSEGA=6; vCNTR=7
vU=8
vP=12
vC=16
vONES=20
vGD=22
vJ4=24; vAI=25; vAQ=26; vT0=27; vT1=28; vT2=29; vNS=30; vRA=31
I(f"v_and_b32 v{vLANE}, 63, v0")
I(f"v_and_b32 v{vJ}, 15, v0")
I(f"v_bfe_u32 v{vG}, v0, 4, 2")
I(f"v_lshrrev_b32 v{vROW}, 4, v0")
I(f"v_lshrrev_b32 v{vT0}, 6, v0")
I(f"v_lshlrev_b32 v{vJ4}, 2, v{vJ}")
I(f"v_readfirstlane_b32 s3, v{vT0}")
I(f"s_mul_i32 s10, s2, {NB}")
I(f"s_sub_u32 s11, {N}, s10")
I(f"s_min_u32 s11, s11, {NB}")
I("s_waitcnt lgkmcnt(0)")
srd(12, 8,9, N, add=TAB_OFF, stride=256)
srd(16, 8,9, WS_SZ)
srd(20, 6,7, N*128)
I(f"v_lshrrev_b32 v{vT0}, 2, v0")
I(f"v_lshlrev_b32 v{vT1}, 2, v{vT0}")
I("s_lshl_b32 s24, s2, 10")
I(f"s_add_u32 s24, s24, {hex(CELL_OFF)}")
I(f"v_mov_b32 v{vCELL}, 0")
I(f"v_cmp_gt_u32 vcc, {C}, v{vT0}")
I("s_mov_b64 exec, vcc")
I(f"buffer_load_dword v{vCELL}, v{vT1}, s[16:19], s24 offen")
I("s_mov_b64 exec, -1")
I(f"v_mul_u32_u24 v{vSEGA}, 25600, v{vT0}")
I(f"v_and_b32 v{vT1}, 3, v0")
I(f"v_lshl_add_u32 v{vSEGA}, v{vT1}, 4, v{vSEGA}")
I(f"v_lshlrev_b32 v{vT0}, 4, v0")
I(f"v_mov_b32 v{vT2}, 0x7f000000")
I("s_lshl_b32 s25, s10, 8")
I(f"s_add_u32 s26, s25, {hex(P_OFF)}")
I(f"s_add_u32 s27, s25, {hex(U_OFF)}")
I(f"v_cmp_gt_u32 vcc, s11, v{vROW}")
I("s_mov_b64 s[28:29], vcc")
I("s_nop 0")
I(f"v_cndmask_b32 v{vT0}, v{vT2}, v{vT0}, vcc")
I(f"buffer_load_dwordx4 v[{vP}:{vP+3}], v{vT0}, s[16:19], s26 offen")
I(f"buffer_load_dwordx4 v[{vU}:{vU+3}], v{vT0}, s[16:19], s27 offen")
I(f"v_lshlrev_b32 v{vT0}, 3, v{vJ}")
I(f"v_add_u32 v{vT0}, 16384, v{vT0}")
I(f"global_load_dwordx2 v[{vC+2}:{vC+3}], v{vT0}, s[4:5]")
vFL=32
I(f"v_lshlrev_b32 v{vT1}, 2, v0")
I(f"s_mov_b32 s30, {hex(FLG_OFF)}")
I(f"v_cmp_gt_u32 vcc, 391, v0")
I("s_nop 1")
I(f"v_cndmask_b32 v{vFL}, v{vT2}, v{vT1}, vcc")
I(f"buffer_load_dword v{vFL}, v{vFL}, s[16:19], s30 offen")
I(f"v_cmp_gt_u32 vcc, 80, v0")
I("s_mov_b64 exec, vcc")
I(f"v_mov_b32 v{vT2}, 0")
I(f"ds_write_b32 v{vT1}, v{vT2} offset:{CNT}")
I("s_mov_b64 exec, -1")
I(f"v_mov_b32 v{vONES}, 1.0")
I(f"v_mov_b32 v{vONES+1}, 1.0")
I(f"v_mul_u32_u24 v{vRA}, {RS}, v{vROW}")
I(f"v_add3_u32 v{vRA}, v{vRA}, v{vJ4}, v{vROW}")
I(f"v_sub_u32 v{vRA}, v{vRA}, v{vROW}")
I(f"v_add_u32 v{vRA}, {XS}, v{vRA}")
I("s_mov_b32 s31, 0")
I("s_waitcnt lgkmcnt(0)")
I("s_barrier")
I("s_waitcnt vmcnt(0)")
I(f"v_and_b32 v{vT0}, 0xffff, v{vCELL}")
I(f"v_lshl_add_u32 v{vSEGA}, v{vT0}, 3, v{vSEGA}")
I(f"v_add_u32 v{vSEGA}, {hex(REC_OFF)}, v{vSEGA}")
I(f"v_lshrrev_b32 v{vCELL}, 16, v{vCELL}")
I(f"v_cmp_lt_u32 vcc, {CAP}, v{vCELL}")
I("s_and_saveexec_b64 s[32:33], vcc")
I("s_cbranch_execz K2_NOMAX")
I(f"v_mov_b32 v{vT0}, 0")
I(f"ds_max_u32 v{vT0}, v{vCELL} offset:{MISC}")
L("K2_NOMAX")
I("s_mov_b64 exec, -1")
I("s_mov_b32 s50, 1")
L("K2_RESTART")
I("s_mov_b32 s34, 0")
I(f"v_mov_b32 v40, 0"); I(f"v_mov_b32 v41, 0"); I(f"v_mov_b32 v42, 0"); I(f"v_mov_b32 v43, 0")
I(f"v_lshlrev_b32 v{vT0}, 4, v0")
I(f"v_add_u32 v{vT0}, {ACCB}, v{vT0}")
I(f"v_cmp_gt_u32 vcc, 1000, v0")
I("s_mov_b64 exec, vcc")
I(f"ds_write_b128 v{vT0}, v[40:43]")
I("s_mov_b64 exec, -1")
I(f"v_mov_b32 v{vGD}, 0"); I(f"v_mov_b32 v{vGD+1}, 0")
L("K2_ROUND")
REC=48
RKR=68
AR=78
I(f"v_and_b32 v{vT1}, 3, v0")
I(f"v_lshlrev_b32 v{vT1}, 1, v{vT1}")
I(f"v_subrev_u32 v{vCNTR}, s34, v{vCELL}")
I(f"v_sub_u32 v{vCNTR}, v{vCNTR}, v{vT1}")
I("s_lshl_b32 s35, s34, 3")
for k in range(NLD):
    I(f"v_cmp_lt_i32 vcc, {8*k}, v{vCNTR}")
    I("s_mov_b64 exec, vcc")
    I("s_cbranch_execz K2_LDONE")
    I(f"buffer_load_dwordx4 v[{REC+4*k}:{REC+4*k+3}], v{vSEGA}, s[16:19], s35 offen offset:{64*k}")
L("K2_LDONE")
I("s_mov_b64 exec, -1")
I("s_cmp_eq_u32 s50, 0")
I("s_cbranch_scc1 K2_NOCHK")
I("s_mov_b32 s50, 0")
I(f"v_lshlrev_b32 v{vC}, 16, v{vC+2}")
I(f"v_and_b32 v{vC+1}, 0xffff0000, v{vC+2}")
I(f"v_lshlrev_b32 v{vC+2}, 16, v{vC+3}")
I(f"v_and_b32 v{vC+3}, 0xffff0000, v{vC+3}")
for i in range(4):
    I(f"v_mul_f32 v{vC+i}, {hex(NEG_LOG2E)}, v{vC+i}")
I(f"v_max3_f32 v{vT0}, abs(v{vP}), abs(v{vP+1}), abs(v{vP+2})")
I(f"v_max_f32 v{vT0}, abs(v{vP+3}), v{vT0}")
I(f"v_mov_b32 v{vT1}, {hex(f32(60.0))}")
I(f"v_cmp_nlt_f32 vcc, v{vT0}, v{vT1}")
I(f"v_cmp_ne_u32 s[32:33], 0, v{vFL}")
I("s_or_b64 vcc, vcc, s[32:33]")
I("s_and_saveexec_b64 s[32:33], vcc")
I("s_cbranch_execz K2_NOBAD")
I(f"v_mov_b32 v{vT0}, 0")
I(f"v_mov_b32 v{vT1}, 1")
I(f"ds_write_b32 v{vT0}, v{vT1} offset:{MISC+4}")
L("K2_NOBAD")
I("s_mov_b64 exec, -1")
L("K2_NOCHK")
I(f"v_mov_b32 v{vT2}, 1")
I("s_waitcnt vmcnt(0)")
for k in range(NLD):
    I(f"v_and_b32 v{AR+2*k}, 0xfc, v{REC+4*k+1}")
    I(f"v_and_b32 v{AR+2*k+1}, 0xfc, v{REC+4*k+3}")
for k in range(NLD):
    I(f"v_cmp_lt_i32 vcc, {8*k}, v{vCNTR}")
    I("s_mov_b64 exec, vcc")
    I(f"s_cbranch_execz K2_HDONE")
    I(f"ds_add_rtn_u32 v{RKR+2*k}, v{AR+2*k}, v{vT2} offset:{CNT}")
    I(f"v_cmp_lt_i32 vcc, {8*k+1}, v{vCNTR}")
    I("s_mov_b64 exec, vcc")
    I(f"ds_add_rtn_u32 v{RKR+2*k+1}, v{AR+2*k+1}, v{vT2} offset:{CNT}")
L("K2_HDONE")
I("s_mov_b64 exec, -1")
I("s_waitcnt vmcnt(0) lgkmcnt(0)")
I("s_barrier")
I(f"v_lshlrev_b32 v{vT0}, 2, v{vLANE}")
I(f"ds_read_b32 v40, v{vT0} offset:{CNT}")
I(f"v_mov_b32 v{vT1}, 0")
I(f"ds_read_b64 v[42:43], v{vT1} offset:{MISC}")
I("s_waitcnt lgkmcnt(0)")
I("v_add_u32 v41, 3, v40")
I("v_and_b32 v41, -4, v41")
I(f"v_mov_b32 v{vNS}, v41")
I("v_readfirstlane_b32 s36, v42")
I("v_readfirstlane_b32 s37, v43")
wave_scan(vNS)
I(f"v_readlane_b32 s38, v{vNS}, 63")
I(f"v_sub_u32 v{vNS}, v{vNS}, v41")
I("s_or_b32 s31, s31, s37")
I("s_lshr_b32 s39, s38, 2")
I("s_add_u32 s40, s39, 3")
I("s_lshr_b32 s40, s40, 2")
I(f"v_mov_b32 v44, {N}")
I("v_mov_b32 v45, 0")
I("s_cmp_eq_u32 s3, 0")
I("s_cbranch_scc0 K2_NOPAD")
I(f"v_add_lshl_u32 v46, v{vNS}, v40, 2")
for i in range(3):
    I(f"v_add_u32 v47, {i}, v40")
    I("v_cmp_lt_u32 vcc, v47, v41")
    I("s_mov_b64 exec, vcc")
    I(f"ds_write_b32 v46, v44 offset:{IDX+4*i}")
    I(f"ds_write_b32 v46, v45 offset:{EV+4*i}")
I("s_mov_b64 exec, -1")
L("K2_NOPAD")
I("s_cmp_eq_u32 s3, 1")
I("s_cbranch_scc0 K2_NOTAIL")
I(f"v_add_lshl_u32 v46, s38, v{vLANE}, 2")
I(f"v_cmp_gt_u32 vcc, 12, v{vLANE}")
I("s_mov_b64 exec, vcc")
I(f"ds_write_b32 v46, v44 offset:{IDX}")
I(f"ds_write_b32 v46, v45 offset:{EV}")
I(f"v_add_lshl_u32 v46, s39, v{vLANE}, 2")
I(f"v_mov_b32 v47, {XS+NB*RS}")
I(f"v_cmp_gt_u32 vcc, 3, v{vLANE}")
I("s_mov_b64 exec, vcc")
I(f"ds_write_b32 v46, v47 offset:{QN}")
I("s_mov_b64 exec, -1")
L("K2_NOTAIL")
I("s_cmp_lg_u32 s34, 0")
I("s_cbranch_scc1 K2_NOXS")
for i in range(4):
    I(f"v_mov_b32 v{40+i}, v{vP+i}")
I("s_cmp_lg_u32 s31, 0")
I("s_cbranch_scc1 K2_XSW")
for i in range(4):
    I(f"v_exp_f32 v{40+i}, v{vP+i}")
I("s_nop 0")
L("K2_XSW")
I(f"v_cmp_gt_u32 vcc, {(NB+1)*16}, v0")
I("s_mov_b64 exec, vcc")
I(f"ds_write2_b32 v{vRA}, v40, v41 offset0:0 offset1:16")
I(f"ds_write2_b32 v{vRA}, v42, v43 offset0:32 offset1:48")
I("s_mov_b64 exec, -1")
L("K2_NOXS")
I(f"v_mov_b32 v44, {XS}")
I("s_mov_b32 s41, 80")
for k in range(NLD):
    I("s_mov_b64 exec, -1")
    I(f"v_cmp_lt_i32 vcc, {8*k}, v{vCNTR}")
    I(f"s_cbranch_vccz K2_SDONE")
    I(f"ds_bpermute_b32 v40, v{AR+2*k}, v{vNS}")
    I(f"ds_bpermute_b32 v41, v{AR+2*k+1}, v{vNS}")
    for u in range(2):
        r=2*k+u
        if u==1: I("s_mov_b64 exec, -1")
        I(f"v_cmp_lt_i32 vcc, {8*k+u}, v{vCNTR}")
        I("s_mov_b64 exec, vcc")
        I(f"s_waitcnt lgkmcnt({1 if u==0 else 3})" if False else f"s_waitcnt lgkmcnt(0)")
        I(f"v_add_u32 v{40+u}, v{40+u}, v{RKR+r}")
        I(f"v_lshlrev_b32 v42, 2, v{40+u}")
        I(f"v_and_b32 v43, 0xffff0000, v{REC+4*k+2*u+1}")
        I(f"ds_write_b32 v42, v{REC+4*k+2*u} offset:{IDX}")
        I(f"ds_write_b32 v42, v43 offset:{EV}")
        I(f"v_and_b32 v45, 3, v{RKR+r}")
        I(f"v_mad_u32_u24 v46, v{AR+r}, s41, v44")
        I(f"v_cmp_eq_u32 vcc, 0, v45")
        I("s_and_b64 exec, exec, vcc")
        I(f"ds_write_b32 v{40+u}, v46 offset:{QN}")
L("K2_SDONE")
I("s_mov_b64 exec, -1")
I("s_waitcnt lgkmcnt(0)")
I("s_barrier")
I(f"v_cmp_gt_u32 vcc, 64, v0")
I("s_mov_b64 exec, vcc")
I(f"v_lshlrev_b32 v{vT0}, 2, v0")
I(f"v_mov_b32 v{vT1}, 0")
I(f"ds_write_b32 v{vT0}, v{vT1} offset:{CNT}")
I("s_mov_b64 exec, -1")

IDXR=32
QNR=40
GS=[48,64]
XR=[80,84]; ER=[88,92]; AX=[41,42]
T=96
D01,D23,N01,N23,DD,NN = 112,114,116,118,120,122
DB=124; M=44

def pk(op,d,a,b,c=None,sel=None):
    s=f"v_pk_{op}_f32 v[{d}:{d+1}], v[{a}:{a+1}], v[{b}:{b+1}]"
    if c is not None: s+=f", v[{c}:{c+1}]"
    if sel: s+=" "+sel
    I(s)

def lds_idx():
    for k in range(4):
        I(f"ds_read_b32 v{IDXR+2*k}, v{vAI} offset:{IDX+4*k}")
    I(f"ds_read_b32 v{QNR}, v{vAQ} offset:{QN}")

def issue(n):
    for k in range(4):
        I(f"buffer_load_dwordx4 v[{GS[n]+4*k}:{GS[n]+4*k+3}], v[{IDXR+2*k}:{IDXR+2*k+1}], s[12:15], 0 idxen offen")
    I(f"v_add_u32 v{AX[n]}, v{QNR}, v{vJ4}")
    I(f"ds_read2_b32 v[{XR[n]}:{XR[n]+1}], v{AX[n]} offset0:0 offset1:16")
    I(f"ds_read2_b32 v[{XR[n]+2}:{XR[n]+3}], v{AX[n]} offset0:32 offset1:48")
    I(f"ds_read_b128 v[{ER[n]}:{ER[n]+3}], v{vAI} offset:{EV}")
    I(f"v_add_u32 v{vAI}, 256, v{vAI}")
    I(f"v_add_u32 v{vAQ}, 64, v{vAQ}")
    lds_idx()

def compute(p, safe):
    G=GS[p]; X=XR[p]; Ev=ER[p]
    for a in range(2):
        Ta=T+8*a
        for k in range(4):
            sel = "op_sel:[0,0,0] op_sel_hi:[0,1,1]" if k%2==0 else "op_sel:[1,0,0] op_sel_hi:[1,1,1]"
            pk("fma", Ta+2*k, Ev+(k&2), vC+2*a, G+4*k+2*a, sel)
        if safe:
            for k in range(4):
                pk("add", Ta+2*k, Ta+2*k, X+2*a)
    for a in range(2):
        Ta=T+8*a
        for k in range(4):
            I(f"v_exp_f32 v{Ta+2*k}, v{Ta+2*k}")
            I(f"v_exp_f32 v{Ta+2*k+1}, v{Ta+2*k+1}")
            I(f"v_lshlrev_b64 v[{G+4*k+2*a}:{G+4*k+2*a+1}], 16, v[{G+4*k+2*a}:{G+4*k+2*a+1}]")
    for a in range(2):
        Ta=T+8*a
        H=lambda k: G+4*k+2*a
        d=lambda k: Ta+2*k
        if safe:
            for k in range(4):
                pk("add", d(k), d(k), vONES)
            for k in range(4):
                I(f"v_rcp_f32 v{d(k)}, v{d(k)}")
                I(f"v_rcp_f32 v{d(k)+1}, v{d(k)+1}")
            I("s_nop 0")
            pk("mul", M+2*a, H(0), d(0))
            for k in range(1,4):
                pk("fma", M+2*a, H(k), d(k), M+2*a)
        else:
            for k in range(4):
                pk("fma", d(k), X+2*a, d(k), vONES)
            pk("mul", D01, d(0), d(1))
            pk("mul", D23, d(2), d(3))
            pk("mul", N01, H(0), d(1))
            pk("mul", N23, H(2), d(3))
            Dd = DB if a==0 else DD
            pk("mul", Dd, D01, D23)
            pk("fma", N01, H(1), d(0), N01)
            pk("fma", N23, H(3), d(2), N23)
            I(f"v_rcp_f32 v{d(0)}, v{Dd}")
            I(f"v_rcp_f32 v{d(0)+1}, v{Dd+1}")
            pk("mul", NN, N01, D23)
            pk("fma", NN, N23, D01, NN)
            pk("mul", M+2*a, NN, d(0))
    if not safe:
        pk("fma", vGD, DB, DD, vGD)
    for i in range(4):
        I(f"ds_add_f32 v{AX[p]}, v{M+i} offset:{ACCO+64*i}")

def mainloop(tag, safe):
    L(f"K2_MAIN_{tag}")
    for half in range(2):
        p=half; n=1-half
        L(f"K2_IT_{tag}{half}")
        I("s_add_u32 s42, s42, 16")
        I("s_cmp_lt_u32 s42, s40")
        I(f"s_cbranch_scc0 K2_NOPF_{tag}{half}")
        I("s_waitcnt lgkmcnt(4)")
        issue(n)
        I("s_waitcnt vmcnt(4)")
        compute(p, safe)
        if half==1:
            I(f"s_branch K2_IT_{tag}0")
    for half in range(2):
        L(f"K2_NOPF_{tag}{half}")
        I("s_waitcnt vmcnt(0) lgkmcnt(0)")
        compute(half, safe)
        I("s_branch K2_MDONE")

I("s_cmp_ge_u32 s3, s40")
I("s_cbranch_scc1 K2_MDONE")
I("s_mov_b32 s42, s3")
I(f"v_mul_u32_u24 v{vT0}, s40, v{vG}")
I(f"v_add_u32 v{vT0}, s3, v{vT0}")
I(f"v_lshlrev_b32 v{vAI}, 4, v{vT0}")
I(f"v_lshlrev_b32 v{vAQ}, 2, v{vT0}")
for k in range(4):
    I(f"v_lshlrev_b32 v{IDXR+2*k+1}, 4, v{vJ}")
lds_idx()
I("s_waitcnt lgkmcnt(0)")
issue(0)
I("s_waitcnt lgkmcnt(0)")
I("s_cmp_lg_u32 s31, 0")
I("s_cbranch_scc1 K2_MAIN_S")
mainloop("F", False)
mainloop("S", True)
L("K2_MDONE")
I(f"v_max_f32 v{vT0}, v{vGD}, v{vGD+1}")
I(f"v_add_f32 v{vT2}, v{vGD}, v{vGD+1}")
I(f"v_mov_b32 v{vT1}, {hex(f32(2.0**60))}")
I(f"v_cmp_nlt_f32 vcc, v{vT2}, v{vT1}")
I("s_and_saveexec_b64 s[32:33], vcc")
I("s_cbranch_execz K2_NOBAD2")
I(f"v_mov_b32 v{vT0}, 0")
I(f"v_mov_b32 v{vT1}, 1")
I(f"ds_write_b32 v{vT0}, v{vT1} offset:{MISC+8}")
L("K2_NOBAD2")
I("s_mov_b64 exec, -1")
I("s_waitcnt lgkmcnt(0)")
I("s_barrier")
I(f"s_add_u32 s34, s34, {CAP}")
I("s_cmp_lt_u32 s34, s36")
I("s_cbranch_scc1 K2_ROUND")
I(f"v_mov_b32 v{vT0}, 0")
I(f"ds_read_b32 v{vT1}, v{vT0} offset:{MISC+8}")
I(f"v_add_u32 v{vT0}, {ACCO}, v{vRA}")
I(f"v_min_u32 v{vT0}, {ACCB+NB*RS}, v{vT0}")
I(f"ds_read2_b32 v[40:41], v{vT0} offset0:0 offset1:16")
I(f"ds_read2_b32 v[42:43], v{vT0} offset0:32 offset1:48")
I("s_waitcnt lgkmcnt(0)")
I(f"v_readfirstlane_b32 s37, v{vT1}")
I("s_cmp_lg_u32 s31, 0")
I("s_cbranch_scc1 K2_EPI")
I("s_cmp_eq_u32 s37, 0")
I("s_cbranch_scc1 K2_EPI")
I("s_mov_b32 s31, 1")
I("s_barrier")
I("s_branch K2_RESTART")
L("K2_EPI")
for i in range(4):
    I(f"v_add_f32 v{40+i}, v{40+i}, v{vU+i}")
for i in range(4):
    I(f"v_mul_f32 v{44+i}, {hex(NEG_LOG2E)}, v{40+i}")
for i in range(4):
    I(f"v_exp_f32 v{44+i}, v{44+i}")
I("s_nop 0")
for i in range(4):
    I(f"v_add_f32 v{44+i}, 1.0, v{44+i}")
for i in range(4):
    I(f"v_rcp_f32 v{44+i}, v{44+i}")
I("s_nop 0")
for i in range(4):
    I(f"v_mul_f32 v{40+i}, v{40+i}, v{44+i}")
I("v_cvt_pk_bf16_f32 v44, v40, v41")
I("v_cvt_pk_bf16_f32 v45, v42, v43")
I(f"v_lshlrev_b32 v{vT0}, 3, v0")
I("s_lshl_b32 s25, s10, 7")
I("s_mov_b64 exec, s[28:29]")
I(f"buffer_store_dwordx2 v[44:45], v{vT0}, s[20:23], s25 offen")
L("K2_END")
I("s_endpgm")

def kd(name, vg, sg):
    out.append(f""".p2align 6
.amdhsa_kernel {name}
  .amdhsa_next_free_vgpr {vg}
  .amdhsa_next_free_sgpr {sg}
  .amdhsa_accum_offset {vg}
  .amdhsa_group_segment_fixed_size 0
  .amdhsa_kernarg_size 80
  .amdhsa_user_sgpr_count 2
  .amdhsa_user_sgpr_kernarg_segment_ptr 1
  .amdhsa_system_sgpr_workgroup_id_x 1
.end_amdhsa_kernel""")
out.append('.section .rodata,"a"')
kd("egc_bin_kernel",128,64)
kd("egc_main_kernel",128,64)
dst=sys.argv[1] if len(sys.argv)>1 else 'gather_scatter__edge_featured_mpnn_egc__graph.s'
open(dst,'w').write("\n".join(out)+"\n")
```

```python
import re, struct
def f32(x): return struct.unpack('<I',struct.pack('<f',x))[0]

class Asm:
    def __init__(self):
        self.out=[]
    def raw(self,s): self.out.append(s)
    def I(self,s): self.out.append("    "+s)
    def L(self,s): self.out.append(s+":")

_reg=re.compile(r'\b([vs])(\d+)\b|\b([vs])\[(\d+):(\d+)\]|\b(vcc|exec)\b')
def regs(txt):
    r=set()
    for m in _reg.finditer(txt):
        if m.group(1): r.add((m.group(1),int(m.group(2))))
        elif m.group(3):
            for i in range(int(m.group(4)),int(m.group(5))+1): r.add((m.group(3),i))
        else: r.add((m.group(6),0))
    return r
TRANS=('v_exp_','v_log_','v_rcp_','v_rsq_','v_sqrt_','v_sin_','v_cos_')
def split_ops(s):
    s=s.split(';')[0].strip()
    p=s.split(None,1)
    op=p[0]; rest=p[1] if len(p)>1 else ''
    ops=[]; depth=0; cur=''
    for ch in rest:
        if ch in '[(': depth+=1
        if ch in '])': depth-=1
        if ch==',' and depth==0: ops.append(cur.strip()); cur=''
        else: cur+=ch
    if cur.strip(): ops.append(cur.strip())
    return op,ops
def info(line):
    op,ops=split_ops(line)
    d=dict(op=op,w=set(),r=set(),valu=False,vmem=False,ds=False,mfma=False,trans=False,dpp=False,store4=set(),srcc=set())
    if op.startswith('v_'):
        d['valu']=True
        d['mfma']=op.startswith('v_mfma')
        d['trans']=op.startswith(TRANS)
        d['dpp']=('dpp' in op) or ('row_' in line) or ('quad_perm' in line) or ('wave_' in line)
        first=ops[0].split()[0] if ops else ''
        d['w']=regs(first)
        rest=ops[1:]
        if op.startswith(('v_add_co','v_sub_co','v_addc_co','v_subb_co','v_subrev_co')):
            d['w']|=regs(ops[1]); rest=ops[2:]
        for o in rest: d['r']|=regs(o.split(' op_sel')[0].split(' row_')[0])
        if op.startswith('v_cndmask') and len(ops)==3: d['r'].add(('vcc',0))
        if op.startswith(('v_fmac','v_mac','v_pk_fmac','v_dot2c')) or 'dpp' in op or op.startswith('v_writelane'): d['r']|=d['w']
        if d['mfma']: d['srcc']=regs(ops[3])
    elif op.startswith(('buffer_','global_','flat_')):
        d['vmem']=True
        if 'load' in op and ' lds' not in line:
            d['w']=regs(ops[0]);
            for o in ops[1:]: d['r']|=regs(o)
        else:
            for o in ops: d['r']|=regs(o)
            if 'x4' in op or 'x3' in op:
                d['store4']=regs(ops[0]) if op.startswith('buffer_') else regs(ops[1])
    elif op.startswith('ds_'):
        d['ds']=True
        if 'read' in op or 'rtn' in op or 'permute' in op or 'swizzle' in op:
            d['w']=regs(ops[0])
            for o in ops[1:]: d['r']|=regs(o)
        else:
            for o in ops: d['r']|=regs(o)
    return d
def passes(op):
    if '32x32x16' in op: return 8
    if '16x16x32' in op or '16x16x16' in op: return 4
    if '16x16x1_4b' in op: return 8
    return 16
def pad(lines):
    res=[]; hist=[]
    t=0
    for ln in lines:
        s=ln.strip()
        if not ln.startswith('    ') or s.startswith(('.',';')) or not s:
            res.append(ln);
            if s.startswith('.globl') or s.startswith('.section'): hist=[]
            continue
        c=info(s)
        need=0
        for (p,tp) in hist:
            dist=t-tp-1
            req=0
            sw={x for x in p['w'] if x[0] in('s','vcc')}
            vw={x for x in p['w'] if x[0]=='v'}
            if p['valu'] and not p['mfma']:
                if sw and c['valu'] and sw&c['r']:
                    req=max(req,4 if c['op'].startswith(('v_readlane','v_writelane')) else 2)
                if sw and c['vmem'] and sw&c['r']: req=max(req,5)
                if vw and c['op'].startswith(('v_readlane','v_readfirstlane')) and vw&c['r']: req=max(req,1)
                if vw and c['dpp'] and vw&c['r']: req=max(req,2)
                if vw and c['op'].startswith('v_permlane') and vw&(c['r']|c['w']): req=max(req,2)
                if vw and c['mfma'] and vw&c['r']: req=max(req,2)
                if p['trans'] and c['valu'] and not c['trans'] and vw&c['r']: req=max(req,1)
                if p['trans'] and (c['vmem'] or c['ds']) and vw&c['r']: req=max(req,1)
                if ('op_sel' in p['op'] or 'sdwa' in p['op']) and c['valu'] and vw&c['r']: req=max(req,1)
            if p['store4'] and (c['valu'] or c['vmem'] or c['ds']) and p['store4']&c['w']: req=max(req,2)
            if p['mfma']:
                n=passes(p['op'])
                if c['mfma']:
                    if vw&c['srcc']:
                        if not (vw==c['srcc'] and passes(c['op'])==n): req=max(req,n+2)
                    if vw&(c['r']-c['srcc']): req=max(req,n+4)
                    if vw&c['w'] and not (vw==c['srcc']): req=max(req,n+4)
                elif (c['valu'] or c['vmem'] or c['ds']) and vw&(c['r']|c['w']): req=max(req,n+4)
                if c['valu'] and not c['mfma'] and p['srcc']&c['w']: req=max(req,n-1)
            if req>dist: need=max(need,req-dist)
        while need>0:
            k=min(need,16)
            res.append(f"    s_nop {k-1}"); t+=k; need-=k
        res.append(ln)
        if c['op']=='s_nop':
            t+=int(s.split()[1])+1
        else:
            hist.append((c,t)); t+=1
        hist=[(p,tp) for (p,tp) in hist if t-tp<24]
    return res
```

```python
import sys, os
from asmlib import *
PROF=int(os.environ.get('PROF','0'))
ST=os.environ.get('ST','')
STT=os.environ.get('STT','')
NOG=int(os.environ.get('NOG','0')); NOC=int(os.environ.get('NOC','0')); PF=int(os.environ.get('PF','0'))
N=12500; E=800000; NB=49; NBK=256; C=250; CH=3200
TAB_OFF=0; WT_OFF=0x380000; REC_OFF=0x400000; CELL_OFF=0xB00000; FLG_OFF=0xB80000; WS_SZ=0xC00000
PRF_OFF=0x2000000
NTWG=98
LOG2E=1.4426950408889634
NEG_LOG2E=f32(-LOG2E)
A=Asm(); I=A.I; L=A.L; out=A.out

def srd(d, plo, phi, size, add=0, stride=0):
    if add:
        I(f"s_add_u32 s{d}, s{plo}, {hex(add)}")
        I(f"s_addc_u32 s{d+1}, s{phi}, 0")
        I(f"s_and_b32 s{d+1}, s{d+1}, 0xffff")
    else:
        I(f"s_mov_b32 s{d}, s{plo}")
        I(f"s_and_b32 s{d+1}, s{phi}, 0xffff")
    if stride:
        I(f"s_or_b32 s{d+1}, s{d+1}, {hex(stride<<16)}")
    I(f"s_mov_b32 s{d+2}, {hex(size)}")
    I(f"s_mov_b32 s{d+3}, 0x20000")

def wave_scan(x, op="v_add_u32_dpp"):
    for sh in (1,2,4,8):
        I(f"{op} v{x}, v{x}, v{x} row_shr:{sh} row_mask:0xf bank_mask:0xf")
    I(f"{op} v{x}, v{x}, v{x} row_bcast:15 row_mask:0xa bank_mask:0xf")
    I(f"{op} v{x}, v{x}, v{x} row_bcast:31 row_mask:0xc bank_mask:0xf")

ts_n=[0]
def TS():
    if PROF:
        I(f"s_memtime s[{80+2*ts_n[0]}:{81+2*ts_n[0]}]"); ts_n[0]+=1
        if ts_n[0]>1: I("s_waitcnt lgkmcnt(0)")
def prof_start():
    if PROF:
        I("s_memrealtime s[98:99]")
def prof_end(kidx, wsl, wavereg, endlabel, nts):
    if not PROF: return
    I("s_memrealtime s[100:101]")
    I("s_waitcnt lgkmcnt(0)")
    I(f"s_cmp_lg_u32 s{wavereg}, 0")
    I(f"s_cbranch_scc1 {endlabel}")
    I(f"s_add_u32 s44, s{wsl}, {hex(PRF_OFF+kidx*0x10000)}")
    I(f"s_addc_u32 s45, s{wsl+1}, 0")
    I("s_and_b32 s45, s45, 0xffff")
    I("s_mov_b32 s46, 0x10000")
    I("s_mov_b32 s47, 0x20000")
    I("s_lshl_b32 s48, s2, 6")
    I("s_mov_b64 exec, 1")
    I("v_mov_b32 v50, 0")
    I("v_mov_b32 v51, s98")
    I("buffer_store_dword v51, v50, s[44:47], s48 offen offset:0")
    I("v_mov_b32 v52, s100")
    I("buffer_store_dword v52, v50, s[44:47], s48 offen offset:4")
    for i in range(1,nts):
        I(f"s_sub_u32 s49, s{80+2*i}, s80")
        I(f"v_mov_b32 v{52+i}, s49")
        I(f"buffer_store_dword v{52+i}, v50, s[44:47], s48 offen offset:{4+4*i}")

hdr=open('gather_scatter__edge_featured_mpnn_egc__graph.s.ref').read().splitlines()
for l in hdr:
    if l.startswith(';') and '@launch' not in l and 'Override' not in l and 'grid=ceil' not in l:
        out.append(l)
K1_LDS=27648
K2_LDS=134688
K1_GRID=C+NTWG+1
out.append(f"; @launch kernel=egc_bin_kernel grid=({K1_GRID},1,1) block=(512,1,1) lds={K1_LDS}")
out.append(f"; @launch kernel=egc_main_kernel grid=({NBK},1,1) block=(1024,1,1) lds={K2_LDS}")
out.append('.amdgcn_target "amdgcn-amd-amdhsa--gfx950"')
out.append('.text')

out.append('.globl egc_bin_kernel'); out.append('.p2align 8'); out.append('.type egc_bin_kernel,@function')
L('egc_bin_kernel')
I("s_load_dwordx16 s[4:19], s[0:1], 0")
I("s_load_dwordx2 s[20:21], s[0:1], 72")
prof_start(); TS()
I(f"s_cmp_ge_u32 s2, {K1_GRID}")
I("s_cbranch_scc1 K1_END")
I("v_lshrrev_b32 v1, 6, v0")
I("v_and_b32 v2, 63, v0")
I("v_readfirstlane_b32 s3, v1")
I(f"s_cmp_ge_u32 s2, {C}")
I("s_cbranch_scc1 K1_TABLE")
HIST=0; OFFT=1024; RECL=2048
I("s_cmp_ge_u32 s3, 7")
I("s_cbranch_scc1 K1_END")
I("s_mul_i32 s40, s2, 12800")
I("s_add_u32 s41, s40, 6400")
I("s_mul_i32 s42, s2, 6400")
I("s_add_u32 s43, s42, 3200")
I("v_lshlrev_b32 v3, 4, v0")
I("v_lshlrev_b32 v4, 3, v0")
I("v_cmp_gt_u32 vcc, 400, v0")
I("s_mov_b64 s[44:45], vcc")
I("s_mov_b64 exec, vcc")
I("s_waitcnt lgkmcnt(0)")
srd(24, 10,11, E*4)
DST=8; SRC=16; EA=24; BK=32; RK=40; W1=48
I(f"buffer_load_dwordx4 v[{DST}:{DST+3}], v3, s[24:27], s40 offen")
I(f"buffer_load_dwordx4 v[{DST+4}:{DST+7}], v3, s[24:27], s41 offen")
srd(28, 8,9, E*4)
srd(32, 6,7, E*2)
I(f"buffer_load_dwordx2 v[{EA}:{EA+1}], v4, s[32:35], s42 offen")
I(f"buffer_load_dwordx2 v[{EA+2}:{EA+3}], v4, s[32:35], s43 offen")
I(f"buffer_load_dwordx4 v[{SRC}:{SRC+3}], v3, s[28:31], s40 offen")
I(f"buffer_load_dwordx4 v[{SRC+4}:{SRC+7}], v3, s[28:31], s41 offen")
srd(36, 20,21, WS_SZ)
I("v_mov_b32 v5, 0")
I("v_lshlrev_b32 v6, 2, v0")
I("v_cmp_gt_u32 vcc, 256, v0")
I("s_mov_b64 exec, vcc")
I(f"ds_write_b32 v6, v5 offset:{HIST}")
I("s_mov_b64 exec, s[44:45]")
I("v_mov_b32 v7, 1")
I("s_mov_b32 s46, -196")
I("s_mov_b32 s47, 0xffff0000")
I("s_waitcnt lgkmcnt(0)")
I("s_barrier")
I("s_waitcnt vmcnt(4)")
TS()
for k in range(8):
    I(f"v_mul_u32_u24 v5, 21400, v{DST+k}")
    I(f"v_lshrrev_b32 v5, 20, v5")
    I(f"v_lshlrev_b32 v{BK+k}, 2, v5")
    I(f"ds_add_rtn_u32 v{RK+k}, v{BK+k}, v7 offset:{HIST}")
    I(f"v_lshlrev_b32 v6, 2, v{DST+k}")
    I(f"v_mad_i32_i24 v{W1+k}, v5, s46, v6")
I("s_waitcnt vmcnt(2)")
for k in range(8):
    ed=EA+k//2
    if k%2==0: I(f"v_lshl_or_b32 v{W1+k}, v{ed}, 16, v{W1+k}")
    else:      I(f"v_and_or_b32 v{W1+k}, v{ed}, s47, v{W1+k}")
I("s_waitcnt lgkmcnt(0)")
I("s_barrier")
TS()
I("s_mov_b64 exec, -1")
I("v_lshlrev_b32 v5, 4, v2")
I(f"ds_read_b128 v[56:59], v5 offset:{HIST}")
I("s_waitcnt lgkmcnt(0)")
I("v_add_u32 v60, v56, v57")
I("v_add_u32 v61, v60, v58")
I("v_add_u32 v62, v61, v59")
I("v_mov_b32 v63, v62")
wave_scan(63)
I("v_sub_u32 v64, v63, v62")
I("v_add_u32 v65, v64, v56")
I("v_add_u32 v66, v64, v60")
I("v_add_u32 v67, v64, v61")
I(f"ds_write_b128 v5, v[64:67] offset:{OFFT}")
I("s_cmp_lg_u32 s3, 0")
I("s_cbranch_scc1 K1_NOCELL")
I("s_lshl_b32 s48, s2, 10")
I(f"s_add_u32 s48, s48, {hex(CELL_OFF)}")
for i in range(4):
    I(f"v_lshl_or_b32 v{68+i}, v{56+i}, 16, v{64+i}")
I(f"buffer_store_dwordx4 v[68:71], v5, s[36:39], s48 offen {ST}")
L("K1_NOCELL")
I("s_mov_b64 exec, s[44:45]")
for k in range(8):
    I(f"ds_read_b32 v{BK+k}, v{BK+k} offset:{OFFT}")
I("s_waitcnt vmcnt(0)" if False else "s_nop 0")
for k in range(8):
    I(f"s_waitcnt lgkmcnt({7-k})")
    I(f"v_add_lshl_u32 v{BK+k}, v{BK+k}, v{RK+k}, 3")
I("s_cmp_lg_u32 s3, 0")
I("s_cbranch_scc1 K1_W0")
I("s_waitcnt vmcnt(1)")
I("s_branch K1_W1")
L("K1_W0")
I("s_waitcnt vmcnt(0)")
L("K1_W1")
for k in range(8):
    I(f"ds_write2_b32 v{BK+k}, v{SRC+k}, v{W1+k} offset0:{0} offset1:{1}" if False else
      f"v_mov_b32 v{72+2*k}, v{SRC+k}")
    I(f"v_mov_b32 v{73+2*k}, v{W1+k}")
    I(f"ds_write_b64 v{BK+k}, v[{72+2*k}:{73+2*k}] offset:{RECL}")
I("s_waitcnt lgkmcnt(0)")
I("s_barrier")
TS()
for i in range(4):
    I(f"ds_read_b128 v[{56+4*i}:{59+4*i}], v3 offset:{RECL+6400*i}")
I("s_mul_i32 s48, s2, 25600")
I(f"s_add_u32 s48, s48, {hex(REC_OFF)}")
for i in range(4):
    I(f"s_waitcnt lgkmcnt({3-i})")
    I(f"buffer_store_dwordx4 v[{56+4*i}:{59+4*i}], v3, s[36:39], s48 offen {ST}")
    if i<3: I("s_add_u32 s48, s48, 6400")
if PROF:
    I("s_waitcnt vmcnt(0)")
    TS()
    I("s_branch K1_PROF")
else:
    I("s_endpgm")

L("K1_TABLE")
ts_n[0]=1
I(f"s_sub_u32 s22, s2, {C}")
I("v_and_b32 v3, 31, v0")
I("v_bfe_u32 v4, v0, 5, 3")
I("v_lshlrev_b32 v5, 10, v4")
I("v_lshl_add_u32 v5, v3, 2, v5")
I("s_lshr_b32 s40, s3, 2")
I("s_waitcnt lgkmcnt(0)")
I("s_add_u32 s28, s16, 8192")
I("s_addc_u32 s29, s17, 0")
I(f"s_cmp_eq_u32 s22, {NTWG}")
I("s_cselect_b32 s28, s16, s28")
I("s_cselect_b32 s29, s17, s29")
I("s_cselect_b32 s30, s12, s14")
I("s_cselect_b32 s31, s13, s15")
I("s_cmp_eq_u32 s40, 1")
I("s_cselect_b32 s28, s30, s28")
I("s_cselect_b32 s29, s31, s29")
I("s_and_b32 s29, s29, 0xffff")
I("s_mov_b32 s30, 8192")
I("s_mov_b32 s31, 0x20000")
RAW=16
for i in range(8):
    I(f"buffer_load_dword v{RAW+i}, v5, s[28:31], 0 offen offset:{i*128}")
srd(24, 4,5, N*128)
I("s_and_b32 s23, s3, 3")
I("s_lshl_b32 s41, s22, 2")
I("s_add_u32 s41, s41, s23")
XO=96
I("v_lshrrev_b32 v10, 5, v2")
I("s_lshl_b32 s43, s41, 5")
I("v_add_u32 v6, s43, v3")
I("v_lshlrev_b32 v7, 7, v6")
I("v_lshl_add_u32 v7, v10, 4, v7")
for s in range(4):
    I(f"buffer_load_dwordx4 v[{XO+4*s}:{XO+4*s+3}], v7, s[24:27], 0 offen offset:{32*s}")
I("s_mov_b32 s44, 0x05040100")
I("s_mov_b32 s45, 0x07060302")
I("v_and_b32 v8, 15, v3")
I("v_bfe_u32 v9, v8, 1, 2")
I("v_lshlrev_b32 v9, 3, v9")
I("v_lshrrev_b32 v11, 3, v8")
I("v_lshl_add_u32 v9, v11, 2, v9")
I("v_and_b32 v11, 1, v8")
I("v_lshl_add_u32 v9, v11, 1, v9")
I("v_lshlrev_b32 v11, 1, v8")
I("v_lshrrev_b32 v12, 4, v3")
I("v_lshlrev_b32 v12, 12, v12")
I("v_lshl_add_u32 v12, v4, 9, v12")
I("s_lshl_b32 s46, s40, 13")
I("v_add_u32 v12, s46, v12")
I("v_lshl_add_u32 v9, v9, 4, v12")
I("v_lshl_add_u32 v11, v11, 4, v12")
I("s_waitcnt vmcnt(4)")
for r in range(4):
    I(f"v_perm_b32 v{32+r}, v{RAW+2*r+1}, v{RAW+2*r}, s44")
    I(f"v_perm_b32 v{36+r}, v{RAW+2*r+1}, v{RAW+2*r}, s45")
I(f"s_cmp_eq_u32 s22, {NTWG}")
I("s_cbranch_scc0 K1_TAB2")
srd(36, 20,21, 16384, add=WT_OFF)
I(f"buffer_store_dwordx4 v[32:35], v11, s[36:39], 0 offen {ST}")
I(f"buffer_store_dwordx4 v[36:39], v11, s[36:39], 0 offen offset:16 {ST}")
I("s_endpgm")
L("K1_TAB2")
I(f"ds_write_b128 v9, v[32:35]")
I(f"ds_write_b128 v9, v[36:39] offset:16")
I("v_lshlrev_b32 v8, 4, v2")
I("s_lshl_b32 s46, s40, 12")
I("v_add_u32 v9, s46, v8")
I("v_lshlrev_b32 v7, 8, v6")
I("v_lshl_add_u32 v7, v10, 6, v7")
I("s_lshl_b32 s42, s40, 7")
srd(36, 20,21, 12512*256, add=TAB_OFF)
I(f"s_mov_b32 s44, {hex(NEG_LOG2E)}")
I("s_mov_b32 s45, 0x7fffffff")
I("s_mov_b32 s46, 0x80000000")
I("s_mov_b32 s47, 0x7fff0000")
I(f"v_mov_b32 v10, {hex(0x7f7f0000)}")
I(f"v_mov_b32 v11, {hex(0xff7f0000)}")
I("v_mov_b32 v12, 0")
I("s_waitcnt lgkmcnt(0)")
I("s_barrier")
OPS=48
for mm in range(2):
    for s in range(4):
        I(f"ds_read_b128 v[{OPS+16*mm+4*s}:{OPS+16*mm+4*s+3}], v9 offset:{mm*8192+s*1024}")
I("s_waitcnt vmcnt(0)")
TS()
QA=16; VA=32
for mm in range(2):
    for s in range(4):
        I(f"s_waitcnt lgkmcnt({7-(mm*4+s)})")
        a=QA+16*mm
        cc = "0" if s==0 else f"v[{a}:{a+15}]"
        I(f"v_mfma_f32_32x32x16_bf16 v[{a}:{a+15}], v[{OPS+16*mm+4*s}:{OPS+16*mm+4*s+3}], v[{XO+4*s}:{XO+4*s+3}], {cc}")
def fit(dst, val, g, t1, t2):
    I(f"v_med3_f32 v{val}, v{val}, v10, v11")
    I(f"v_and_b32 v{t1}, s45, v{val}")
    I(f"v_add_u32 v{t1}, 0x8000, v{t1}")
    I(f"v_sub_u32 v{t1}, v{t1}, v{g} clamp")
    I(f"v_and_or_b32 v{t2}, v{val}, s46, v{g}")
    I(f"v_bfi_b32 v{dst}, s47, v{t1}, v{t2}")
for r in range(16):
    I(f"v_mul_f32 v{QA+r}, s44, v{QA+r}")
O=80
for g in range(4):
    for pp in range(2):
        r=4*g+2*pp
        t=112+4*pp
        I(f"v_max3_f32 v12, abs(v{VA+r}), abs(v{VA+r+1}), v12")
        I(f"v_cvt_pk_bf16_f32 v{t}, v{VA+r}, v{VA+r}")
        I(f"v_and_b32 v{t}, 0xffff, v{t}")
        fit(O+r, QA+r, t, t+1, t+2)
        I(f"v_lshrrev_b32 v{t}, 16, v{O+r}")
        fit(t+3, VA+r+1, t, t+1, t+2)
        I(f"v_lshrrev_b32 v{t}, 16, v{t+3}")
        fit(O+r+1, QA+r+1, t, t+1, t+2)
    I(f"buffer_store_dwordx4 v[{O+4*g}:{O+4*g+3}], v7, s[36:39], s42 offen offset:{16*g} {STT}")
I(f"v_mov_b32 v13, {hex(f32(2.0**60))}")
I("v_cmp_nlt_f32 vcc, v12, v13")
I("s_cmp_lg_u64 vcc, 0")
I("s_cselect_b32 s48, 1, 0")
I("s_lshl_b32 s49, s41, 1")
I("s_lshr_b32 s50, s3, 2")
I("s_add_u32 s49, s49, s50")
I("s_lshl_b32 s49, s49, 2")
srd(52, 20,21, 4096, add=FLG_OFF)
I("v_mov_b32 v13, s48")
I("v_mov_b32 v14, 0")
I("s_mov_b64 exec, 1")
I(f"buffer_store_dword v13, v14, s[52:55], s49 offen {ST}")
if PROF:
    TS()
    I("s_waitcnt vmcnt(0)")
    TS(); TS()
    L("K1_PROF")
    prof_end(0,20,3,"K1_END",5)
L("K1_END")
I("s_endpgm")

ts_n[0]=0
CNT=0; MISC=256; MARK=512; WQ=4608; XS=20992; US=37376; SLOT=53760; LIST=82688; LRS=1040; LEND=134688
NCAP=128
CAP=40; NLD=5
out.append('.globl egc_main_kernel'); out.append('.p2align 8'); out.append('.type egc_main_kernel,@function')
L('egc_main_kernel')
I("s_load_dwordx4 s[4:7], s[0:1], 48")
I("s_load_dwordx2 s[8:9], s[0:1], 72")
I("s_load_dwordx2 s[52:53], s[0:1], 0")
prof_start(); TS()
I(f"s_cmp_ge_u32 s2, {NBK}")
I("s_cbranch_scc1 K2_END")
vLANE=1; vCELL=2; vSEGA=3; vCNTR=4; vNS=5; vNQ=6; vJ16=7; vSc=8; vQ=9
vC=10; vONES=14; vGD=16; vACC=18; vT0=22; vT1=23; vT2=24; vPF=25; RKR=26
IDXR=36; QE=[44,46]; SA=[48,49]; ACS=[52,56]; XR=[60,64]; ER=[68,72]; T=76; GS=[96,112]
REC=36; AR=56; LT=66; XO=76; WO=96; MACC=112; vFL=92; vG=93
MSK=60
I(f"v_and_b32 v{vLANE}, 63, v0")
I(f"v_lshrrev_b32 v{vT0}, 6, v0")
I(f"v_and_b32 v{vJ16}, 15, v0")
I(f"v_readfirstlane_b32 s3, v{vT0}")
I(f"v_lshlrev_b32 v{vJ16}, 4, v{vJ16}")
I("s_and_b32 s51, s2, 7")
I("s_lshl_b32 s51, s51, 5")
I("s_lshr_b32 s54, s2, 3")
I("s_add_u32 s51, s51, s54")
I(f"s_mul_i32 s10, s51, {NB}")
I(f"s_sub_u32 s11, {N}, s10")
I(f"s_min_u32 s11, s11, {NB}")
I(f"v_lshrrev_b32 v{vT0}, 2, v0")
I(f"v_lshlrev_b32 v{vT1}, 10, v{vT0}")
I(f"v_mov_b32 v{vT2}, 0x7f000000")
I(f"v_cmp_gt_u32 vcc, {C}, v{vT0}")
I("s_lshl_b32 s24, s51, 2")
I(f"s_add_u32 s24, s24, {hex(CELL_OFF)}")
I(f"v_cndmask_b32 v{vT1}, v{vT2}, v{vT1}, vcc")
I(f"v_mul_u32_u24 v{vSEGA}, 25600, v{vT0}")
I(f"v_and_b32 v{vT0}, 3, v0")
I(f"v_lshl_add_u32 v{vSEGA}, v{vT0}, 4, v{vSEGA}")
I(f"v_lshlrev_b32 v{vFL}, 2, v0")
I(f"v_cmp_gt_u32 vcc, 782, v0")
I(f"v_lshrrev_b32 v{vT0}, 1, v{vJ16}")
I(f"v_add_u32 v{vT0}, 16384, v{vT0}")
I(f"v_cndmask_b32 v{vFL}, v{vT2}, v{vFL}, vcc")
I("s_waitcnt lgkmcnt(0)")
srd(16, 8,9, WS_SZ)
I(f"buffer_load_dword v{vCELL}, v{vT1}, s[16:19], s24 offen")
I(f"global_load_dwordx2 v[{vC+2}:{vC+3}], v{vT0}, s[4:5]")
I(f"s_mov_b32 s30, {hex(FLG_OFF)}")
I(f"buffer_load_dword v{vFL}, v{vFL}, s[16:19], s30 offen")
srd(56, 52,53, N*128)
srd(12, 8,9, N, add=TAB_OFF, stride=256)
srd(20, 6,7, N*128)
I(f"v_mov_b32 v{vONES}, 1.0")
I(f"v_mov_b32 v{vONES+1}, 1.0")
I(f"v_lshrrev_b32 v{vSc}, 4, v0")
I(f"v_lshl_add_u32 v{vSc}, v{vSc}, 8, v{vJ16}")
I("s_mov_b32 s31, 0")
I("s_mov_b32 s50, 1")
I(f"v_mov_b32 v{vT2}, 0")
I(f"v_lshlrev_b32 v{vT1}, 2, v{vLANE}")
I(f"ds_write_b32 v{vT1}, v{vT2} offset:{MISC}")
L("K2_RESTART")
I("s_cmp_ge_u32 s3, 8")
I("s_cbranch_scc1 K2_NOXW")
I(f"v_and_b32 v{vT0}, 31, v0")
I(f"v_bfe_u32 v{vT1}, v0, 5, 1")
I("s_and_b32 s25, s3, 1")
I("s_lshl_b32 s25, s25, 5")
I("s_add_u32 s25, s25, s10")
I("s_lshl_b32 s25, s25, 7")
I(f"v_lshlrev_b32 v{vT0}, 7, v{vT0}")
I(f"v_lshl_add_u32 v{vT0}, v{vT1}, 4, v{vT0}")
for s in range(4):
    I(f"buffer_load_dwordx4 v[{XO+4*s}:{XO+4*s+3}], v{vT0}, s[56:59], s25 offen offset:{32*s}")
I("s_lshr_b32 s26, s3, 1")
I("s_lshl_b32 s26, s26, 12")
I(f"s_add_u32 s26, s26, {hex(WT_OFF)}")
I(f"v_lshlrev_b32 v{vT0}, 4, v{vLANE}")
for s in range(4):
    I(f"buffer_load_dwordx4 v[{WO+4*s}:{WO+4*s+3}], v{vT0}, s[16:19], s26 offen offset:{1024*s}")
L("K2_NOXW")
for i in range(4): I(f"v_mov_b32 v{vACC+i}, 0")
I(f"v_mov_b32 v{vGD}, 0"); I(f"v_mov_b32 v{vGD+1}, 0")
I("s_mov_b32 s34, 0")
L("K2_ROUND")
I("s_mov_b32 s35, 0")
I(f"v_mov_b32 v{vT2}, 0")
I(f"v_lshlrev_b32 v{vT1}, 2, v{vLANE}")
I(f"ds_write_b32 v{vT1}, v{vT2} offset:{CNT}")
L("K2_SUB")
for i in range(4): I(f"v_mov_b32 v{REC+i}, {N}")
I(f"v_lshlrev_b32 v{vT0}, 4, v0")
I(f"v_add_u32 v{vT0}, {SLOT}, v{vT0}")
for i in range(4):
    I(f"ds_write_b128 v{vT0}, v[{REC}:{REC+3}] offset:{16384*i}")
I(f"v_add_u32 v{vT0}, 65536, v{vT0}")
I(f"v_min_u32 v{vT0}, {LEND-16}, v{vT0}")
I(f"ds_write_b128 v{vT0}, v[{REC}:{REC+3}]")
I("s_waitcnt lgkmcnt(0)")
I("s_barrier")
I("s_waitcnt vmcnt(0)")
TS()
I("s_cmp_eq_u32 s50, 0")
I("s_cbranch_scc1 K2_NOFIRST")
I(f"v_and_b32 v{vT0}, 0xffff, v{vCELL}")
I(f"v_lshl_add_u32 v{vSEGA}, v{vT0}, 3, v{vSEGA}")
I(f"v_add_u32 v{vSEGA}, {hex(REC_OFF)}, v{vSEGA}")
I(f"v_lshrrev_b32 v{vCELL}, 16, v{vCELL}")
L("K2_NOFIRST")
I(f"v_and_b32 v{vT1}, 3, v0")
I(f"v_lshlrev_b32 v{vT1}, 1, v{vT1}")
I(f"v_subrev_u32 v{vCNTR}, s34, v{vCELL}")
I(f"v_sub_u32 v{vCNTR}, v{vCNTR}, v{vT1}")
I("s_lshl_b32 s36, s34, 3")
for k in range(NLD):
    I(f"v_cmp_lt_i32 s[{MSK+4*k}:{MSK+4*k+1}], {8*k}, v{vCNTR}")
    I(f"v_cmp_lt_i32 s[{MSK+4*k+2}:{MSK+4*k+3}], {8*k+1}, v{vCNTR}")
for k in range(NLD):
    I(f"s_mov_b64 exec, s[{MSK+4*k}:{MSK+4*k+1}]")
    I("s_cbranch_execz K2_LDONE")
    I(f"buffer_load_dwordx4 v[{REC+4*k}:{REC+4*k+3}], v{vSEGA}, s[16:19], s36 offen offset:{64*k}")
L("K2_LDONE")
I("s_mov_b64 exec, -1")
I(f"v_min_u32 v{vT0}, 781, v0")
I(f"v_lshlrev_b32 v{vT0}, 7, v{vT0}")
I(f"s_mul_i32 s37, s54, {782*128}")
if PF: I(f"buffer_load_dword v{vPF}, v{vT0}, s[16:19], s37 offen")
I("s_cmp_eq_u32 s50, 0")
I("s_cbranch_scc1 K2_NOFIRST2")
I("s_mov_b32 s50, 0")
I(f"v_cmp_lt_u32 vcc, {CAP}, v{vCELL}")
I("s_and_saveexec_b64 s[32:33], vcc")
I("s_cbranch_execz K2_NOMAX")
I(f"v_mov_b32 v{vT0}, 0")
I(f"ds_max_u32 v{vT0}, v{vCELL} offset:{MISC}")
L("K2_NOMAX")
I("s_mov_b64 exec, -1")
I(f"v_lshlrev_b32 v{vC}, 16, v{vC+2}")
I(f"v_and_b32 v{vC+1}, 0xffff0000, v{vC+2}")
I(f"v_lshlrev_b32 v{vC+2}, 16, v{vC+3}")
I(f"v_and_b32 v{vC+3}, 0xffff0000, v{vC+3}")
for i in range(4):
    I(f"v_mul_f32 v{vC+i}, {hex(NEG_LOG2E)}, v{vC+i}")
I(f"v_cmp_ne_u32 vcc, 0, v{vFL}")
I("s_and_saveexec_b64 s[32:33], vcc")
I("s_cbranch_execz K2_NOBAD")
I(f"v_mov_b32 v{vT0}, 0")
I(f"v_mov_b32 v{vT1}, 1")
I(f"ds_write_b32 v{vT0}, v{vT1} offset:{MISC+4}")
L("K2_NOBAD")
I("s_mov_b64 exec, -1")
L("K2_NOFIRST2")
I("s_or_b32 s37, s34, s35")
I("s_cmp_lg_u32 s37, 0")
I("s_cbranch_scc1 K2_NOMM")
I("s_cmp_ge_u32 s3, 8")
I("s_cbranch_scc1 K2_NOMM")
for s in range(4):
    cc = "0" if s==0 else f"v[{MACC}:{MACC+15}]"
    I(f"v_mfma_f32_32x32x16_bf16 v[{MACC}:{MACC+15}], v[{XO+4*s}:{XO+4*s+3}], v[{WO+4*s}:{WO+4*s+3}], {cc}")
I(f"v_and_b32 v{vT0}, 31, v0")
I(f"v_bfe_u32 v{vT1}, v0, 5, 1")
I(f"v_lshlrev_b32 v{vT0}, 2, v{vT0}")
I(f"v_lshl_add_u32 v{vT0}, v{vT1}, 10, v{vT0}")
I("s_and_b32 s25, s3, 1")
I("s_lshl_b32 s25, s25, 13")
I("s_bfe_u32 s26, s3, 0x10001")
I("s_lshl_b32 s26, s26, 7")
I("s_add_u32 s25, s25, s26")
I("s_lshr_b32 s26, s3, 2")
I("s_lshl_b32 s26, s26, 14")
I("s_add_u32 s25, s25, s26")
I(f"s_add_u32 s25, s25, {XS}")
I(f"v_add_u32 v{vT0}, s25, v{vT0}")
I("s_cmp_ge_u32 s3, 4")
I("s_cbranch_scc1 K2_MMW")
for r in range(16):
    I(f"v_mul_f32 v{MACC+r}, {hex(NEG_LOG2E)}, v{MACC+r}")
I("s_cmp_lg_u32 s31, 0")
I("s_cbranch_scc1 K2_MMW")
I(f"v_mov_b32 v{vT1}, 0")
for r in range(0,16,2):
    I(f"v_max3_f32 v{vT1}, abs(v{MACC+r}), abs(v{MACC+r+1}), v{vT1}")
for r in range(16):
    I(f"v_exp_f32 v{MACC+r}, v{MACC+r}")
I(f"v_mov_b32 v{vT2}, {hex(f32(60.0))}")
I(f"v_cmp_nlt_f32 vcc, v{vT1}, v{vT2}")
I("s_and_saveexec_b64 s[32:33], vcc")
I("s_cbranch_execz K2_NOBAD1")
I(f"v_mov_b32 v{vT2}, 0")
I(f"v_mov_b32 v{vT1}, 1")
I(f"ds_write_b32 v{vT2}, v{vT1} offset:{MISC+4}")
L("K2_NOBAD1")
I("s_mov_b64 exec, -1")
L("K2_MMW")
I("s_nop 7"); I("s_nop 3")
for r in range(16):
    I(f"ds_write_b32 v{vT0}, v{MACC+r} offset:{(8*(r//4)+(r%4))*256}")
L("K2_NOMM")
I(f"v_mov_b32 v{vT2}, 1")
I(f"v_mov_b32 v{vT1}, {LIST}")
I(f"s_mov_b32 s41, {LRS//4}")
I(f"s_waitcnt vmcnt({PF})")
TS()
for r in range(2*NLD):
    I(f"v_and_b32 v{AR+r}, 0xfc, v{REC+2*r+1}")
I("s_cmp_lg_u32 s35, 0")
I("s_cbranch_scc1 K2_HDONE")
for r in range(2*NLD):
    I(f"s_mov_b64 exec, s[{MSK+2*r}:{MSK+2*r+1}]")
    if r%2==0: I(f"s_cbranch_execz K2_HDONE")
    I(f"ds_add_rtn_u32 v{RKR+r}, v{AR+r}, v{vT2} offset:{CNT}")
L("K2_HDONE")
I("s_mov_b64 exec, -1")
for r in range(2*NLD):
    I(f"v_mad_u32_u24 v{LT+r}, v{AR+r}, s41, v{vT1}")
    I(f"v_and_b32 v{REC+2*r+1}, 0xffff0000, v{REC+2*r+1}")
I("s_waitcnt lgkmcnt(0)")
for r in range(2*NLD):
    I(f"s_mov_b64 exec, s[{MSK+2*r}:{MSK+2*r+1}]")
    if r%2==0: I(f"s_cbranch_execz K2_SDONE")
    I(f"v_subrev_u32 v{AR+r}, s35, v{RKR+r}")
    I(f"v_cmp_gt_u32 vcc, {NCAP}, v{AR+r}")
    I(f"v_lshl_add_u32 v{LT+r}, v{AR+r}, 2, v{LT+r}")
    I("s_mov_b64 exec, vcc")
    I(f"ds_write2_b32 v{LT+r}, v{REC+2*r}, v{REC+2*r+1} offset0:0 offset1:128")
L("K2_SDONE")
I("s_mov_b64 exec, -1")
I("s_waitcnt lgkmcnt(0)")
I("s_barrier")
TS()
I(f"v_lshlrev_b32 v{vT0}, 2, v{vLANE}")
I(f"ds_read_b32 v40, v{vT0} offset:{CNT}")
I(f"v_mov_b32 v{vT1}, 0")
I(f"ds_read_b64 v[42:43], v{vT1} offset:{MISC}")
I(f"s_lshl_b32 s46, s3, 8")
I(f"v_add_u32 v47, s46, v{vT0}")
I(f"ds_write_b32 v47, v{vT1} offset:{MARK}")
I("s_waitcnt lgkmcnt(1)")
I(f"v_subrev_u32 v40, s35, v40")
I(f"v_cmp_lt_i32 vcc, {NCAP}, v40")
I(f"v_med3_i32 v40, v40, 0, v{vT1}" if False else f"v_max_i32 v40, 0, v40")
I(f"v_min_i32 v40, {NCAP}, v40")
I(f"v_add_u32 v{vNQ}, 3, v40")
I(f"v_lshrrev_b32 v{vNQ}, 2, v{vNQ}")
I(f"v_mov_b32 v{vNS}, v{vNQ}")
I("v_readfirstlane_b32 s36, v42")
I("v_readfirstlane_b32 s37, v43")
wave_scan(vNS)
I("s_cmp_lg_u64 vcc, 0")
I("s_cselect_b32 s55, 1, 0")
I(f"v_readlane_b32 s39, v{vNS}, 63")
I(f"v_sub_u32 v{vNS}, v{vNS}, v{vNQ}")
I("s_andn2_b32 s37, s37, s31")
I("s_cmp_lg_u32 s37, 0")
I("s_cbranch_scc1 K2_GOSAFE")
I("s_add_u32 s40, s39, 3")
I("s_lshr_b32 s40, s40, 2")
I("s_lshr_b32 s42, s40, 4")
I("s_and_b32 s43, s40, 15")
I("s_mul_i32 s44, s3, s42")
I("s_min_u32 s45, s3, s43")
I("s_add_u32 s44, s44, s45")
I("s_lshl_b32 s44, s44, 2")
I("s_cmp_lt_u32 s3, s43")
I("s_addc_u32 s40, s42, 0")
I("s_cmp_eq_u32 s40, 0")
I("s_cbranch_scc1 K2_MDONE")
I(f"v_lshl_or_b32 v41, v{vNS}, 8, v{vLANE}")
I(f"v_cmp_ne_u32 vcc, 0, v{vNQ}")
I(f"v_cmp_eq_u32 s[32:33], {NB}, v{vLANE}")
I("s_or_b64 s[48:49], vcc, s[32:33]")
I("s_lshl_b32 s45, s40, 2")
I("s_add_u32 s45, s45, 3")
I(f"s_lshl_b32 s47, s3, 10")
I(f"v_lshlrev_b32 v46, 3, v{vLANE}")
I(f"v_add_u32 v46, s47, v46")
I(f"v_mov_b32 v45, {LIST}")
I(f"s_mov_b32 s41, {LRS}")
L("K2_BUILD")
I(f"v_subrev_u32 v42, s44, v{vNS}")
I(f"v_max_i32 v42, 0, v42")
I(f"v_cmp_gt_u32 vcc, 64, v42")
I(f"v_lshl_add_u32 v42, v42, 2, s46")
I("s_and_b64 exec, vcc, s[48:49]")
I(f"ds_max_u32 v42, v41 offset:{MARK}")
I("s_mov_b64 exec, -1")
I(f"ds_read_b32 v43, v47 offset:{MARK}")
I(f"ds_write_b32 v47, v{vT1} offset:{MARK}")
I(f"v_add_u32 v44, s44, v{vLANE}")
I("s_waitcnt lgkmcnt(1)")
wave_scan(43,"v_max_u32_dpp")
I("v_lshrrev_b32 v42, 8, v43")
I("v_sub_u32 v44, v44, v42")
I("v_min_u32 v44, 31, v44")
I("v_and_b32 v43, 0xff, v43")
I("v_mad_u32_u24 v42, v43, s41, v45")
I("v_lshl_add_u32 v42, v44, 4, v42")
I("v_lshlrev_b32 v43, 8, v43")
I(f"ds_write_b64 v46, v[42:43] offset:{WQ}")
I("v_add_u32 v46, 512, v46")
I("s_add_u32 s44, s44, 64")
I("s_sub_i32 s45, s45, 64")
I("s_cmp_gt_i32 s45, 0")
I("s_cbranch_scc1 K2_BUILD")
TS()

def pk(op,d,a,b,c=None,sel=None):
    s=f"v_pk_{op}_f32 v[{d}:{d+1}], v[{a}:{a+1}], v[{b}:{b+1}]"
    if c is not None: s+=f", v[{c}:{c+1}]"
    if sel: s+=" "+sel
    I(s)
def rd_idx(q):
    for k in range(4):
        I(f"ds_read_b32 v{IDXR+2*k}, v{QE[q]} offset:{4*k}")
def rd_entry(q, off):
    I(f"ds_read_b64 v[{QE[q]}:{QE[q]+1}], v{vQ} offset:{WQ+off}")
def gather(n):
    if NOG: return
    for k in range(4):
        I(f"buffer_load_dwordx4 v[{GS[n]+4*k}:{GS[n]+4*k+3}], v[{IDXR+2*k}:{IDXR+2*k+1}], s[12:15], 0 idxen offen")
def rd_xe(n,q):
    I(f"v_add_u32 v{vT0}, v{QE[q]+1}, v{vJ16}")
    I(f"v_add_u32 v{SA[n]}, v{QE[q]+1}, v{vSc}")
    I(f"ds_read_b128 v[{XR[n]}:{XR[n]+3}], v{vT0} offset:{XS}")
    I(f"ds_read_b128 v[{ER[n]}:{ER[n]+3}], v{QE[q]} offset:512")

def compute(p, safe, lg):
    G=GS[p]; X=XR[p]; Ev=ER[p]; AC=ACS[p]
    if NOC:
        I(f"s_waitcnt lgkmcnt({lg})")
        for k in range(4): I(f"v_add_f32 v{AC+k}, v{G+4*k}, v{AC+k}")
        I(f"ds_write_b128 v{SA[p]}, v[{AC}:{AC+3}] offset:{SLOT}")
        return
    for a in range(2):
        Ta=T+8*a
        for k in range(4):
            sel = "op_sel:[0,0,0] op_sel_hi:[0,1,1]" if k%2==0 else "op_sel:[1,0,0] op_sel_hi:[1,1,1]"
            pk("fma", Ta+2*k, Ev+(k&2), vC+2*a, G+4*k+2*a, sel)
        if safe:
            for k in range(4):
                pk("add", Ta+2*k, Ta+2*k, X+2*a)
    for a in range(2):
        Ta=T+8*a
        for k in range(4):
            I(f"v_exp_f32 v{Ta+2*k}, v{Ta+2*k}")
            I(f"v_exp_f32 v{Ta+2*k+1}, v{Ta+2*k+1}")
            I(f"v_lshlrev_b64 v[{G+4*k+2*a}:{G+4*k+2*a+1}], 16, v[{G+4*k+2*a}:{G+4*k+2*a+1}]")
    waited=False
    for a in range(2):
        Ta=T+8*a
        H=lambda k: G+4*k+2*a
        d=lambda k: Ta+2*k
        if safe:
            for k in range(4):
                pk("add", d(k), d(k), vONES)
            for k in range(4):
                I(f"v_rcp_f32 v{d(k)}, v{d(k)}")
                I(f"v_rcp_f32 v{d(k)+1}, v{d(k)+1}")
            if not waited: I(f"s_waitcnt lgkmcnt({lg})"); waited=True
            for k in range(4):
                pk("fma", AC+2*a, H(k), d(k), AC+2*a)
        else:
            for k in range(4):
                pk("fma", d(k), X+2*a, d(k), vONES)
            pk("mul", H(0), H(0), d(1))
            pk("mul", H(2), H(2), d(3))
            pk("fma", H(0), H(1), d(0), H(0))
            pk("fma", H(2), H(3), d(2), H(2))
            pk("mul", d(0), d(0), d(1))
            pk("mul", d(2), d(2), d(3))
            pk("mul", d(1), d(0), d(2))
            pk("mul", H(0), H(0), d(2))
            I(f"v_rcp_f32 v{d(3)}, v{d(1)}")
            I(f"v_rcp_f32 v{d(3)+1}, v{d(1)+1}")
            pk("fma", H(0), H(2), d(0), H(0))
            if not waited: I(f"s_waitcnt lgkmcnt({lg})"); waited=True
            pk("fma", AC+2*a, H(0), d(3), AC+2*a)
    if not safe:
        pk("fma", vGD, T+2, T+8+2, vGD)
    I(f"ds_write_b128 v{SA[p]}, v[{AC}:{AC+3}] offset:{SLOT}")

def mainloop(tag, safe):
    L(f"K2_MAIN_{tag}")
    for half in range(2):
        p=half; n=1-half
        L(f"K2_IT_{tag}{half}")
        I("s_sub_u32 s40, s40, 1")
        I("s_cmp_eq_u32 s40, 0")
        I(f"s_cbranch_scc1 K2_NOPF_{tag}{half}")
        I("s_waitcnt lgkmcnt(2)")
        gather(n)
        rd_xe(n,n)
        rd_idx(p)
        rd_entry(n, 24+8*half)
        if half==1: I(f"v_add_u32 v{vQ}, 16, v{vQ}")
        I("s_waitcnt vmcnt(4)")
        compute(p, safe, 7)
        I(f"ds_read_b128 v[{ACS[n]}:{ACS[n]+3}], v{SA[n]} offset:{SLOT}")
        if half==1:
            I(f"s_branch K2_IT_{tag}0")
    for half in range(2):
        L(f"K2_NOPF_{tag}{half}")
        I("s_waitcnt vmcnt(0) lgkmcnt(0)")
        compute(half, safe, 0)
        I("s_branch K2_MDONE")

I(f"v_bfe_u32 v{vQ}, v0, 4, 2")
I(f"v_mul_u32_u24 v{vQ}, s40, v{vQ}")
I(f"v_lshl_add_u32 v{vQ}, v{vQ}, 3, s47")
for k in range(4):
    I(f"v_mov_b32 v{IDXR+2*k+1}, v{vJ16}")
rd_entry(0,0)
rd_entry(1,8)
I("s_waitcnt lgkmcnt(1)")
rd_idx(0)
rd_xe(0,0)
I("s_waitcnt lgkmcnt(2)")
gather(0)
rd_idx(1)
rd_entry(0,16)
I(f"ds_read_b128 v[{ACS[0]}:{ACS[0]+3}], v{SA[0]} offset:{SLOT}")
I(f"ds_read_b128 v[{ACS[0]}:{ACS[0]+3}], v{SA[0]} offset:{SLOT}")
I("s_cmp_lg_u32 s31, 0")
I("s_cbranch_scc1 K2_MAIN_S")
mainloop("F", False)
mainloop("S", True)
L("K2_MDONE")
TS()
I(f"v_add_f32 v{vT2}, v{vGD}, v{vGD+1}" if not NOG else f"v_mov_b32 v{vT2}, 0")
I(f"v_mov_b32 v{vT1}, {hex(f32(2.0**60))}")
I(f"v_cmp_nlt_f32 vcc, v{vT2}, v{vT1}")
I("s_and_saveexec_b64 s[32:33], vcc")
I("s_cbranch_execz K2_NOBAD2")
I(f"v_mov_b32 v{vT0}, 0")
I(f"v_mov_b32 v{vT1}, 1")
I(f"ds_write_b32 v{vT0}, v{vT1} offset:{MISC+8}")
L("K2_NOBAD2")
I("s_mov_b64 exec, -1")
I(f"v_lshrrev_b32 v40, 4, v0")
I(f"v_lshlrev_b32 v41, 2, v40")
I(f"ds_bpermute_b32 v42, v41, v{vNS}")
I(f"ds_bpermute_b32 v43, v41, v{vNQ}")
I("s_add_u32 s44, s42, 1")
I("s_max_u32 s45, s42, 1")
I("v_cvt_f32_u32 v44, s44")
I("v_cvt_f32_u32 v45, s45")
I("v_rcp_f32 v44, v44")
I("v_rcp_f32 v45, v45")
I("s_mul_i32 s46, s43, s44")
I("s_lshl_b32 s46, s46, 2")
I("s_lshl_b32 s47, s43, 2")
I(f"v_mul_f32 v44, {hex(f32(2.0**20))}, v44")
I(f"v_mul_f32 v45, {hex(f32(2.0**20))}, v45")
I("v_cvt_u32_f32 v44, v44")
I("v_cvt_u32_f32 v45, v45")
I("v_add_u32 v44, 2, v44")
I("v_add_u32 v45, 2, v45")
I("s_waitcnt lgkmcnt(0)")
I("v_add3_u32 v46, v42, v43, -1")
def gq(dst,q,t):
    I(f"v_mul_u32_u24 v{dst}, v{q}, v44")
    I(f"v_lshrrev_b32 v{dst}, 20, v{dst}")
    I(f"v_subrev_u32 v{t}, s46, v{q}")
    I(f"v_mul_u32_u24 v{t}, v{t}, v45")
    I(f"v_lshrrev_b32 v{t}, 20, v{t}")
    I(f"v_add_u32 v{t}, s47, v{t}")
    I(f"v_cmp_gt_u32 vcc, s46, v{q}")
    I(f"v_cndmask_b32 v{dst}, v{t}, v{dst}, vcc")
gq(47,42,48)
gq(49,46,48)
I("v_sub_u32 v49, v49, v47")
I("v_add_u32 v49, 1, v49")
I("v_cmp_ne_u32 vcc, 0, v43")
I("v_cndmask_b32 v49, 0, v49, vcc")
I("v_add_u32 v47, v47, v40")
I(f"v_lshl_add_u32 v47, v47, 8, v{vJ16}")
I(f"v_lshl_add_u32 v41, v40, 8, v{vJ16}")
for i in range(12): I(f"v_mov_b32 v{52+i}, 0")
I("s_barrier")
TS()
I(f"v_mov_b32 v{vT0}, 0")
I(f"ds_read_b32 v{vT1}, v{vT0} offset:{MISC+8}")
I(f"ds_read_b128 v[64:67], v41 offset:{US}")
L("K2_RED")
for i in range(3):
    I(f"v_cmp_lt_i32 vcc, {i}, v49")
    I("s_mov_b64 exec, vcc")
    I(f"ds_read_b128 v[{52+4*i}:{55+4*i}], v47 offset:{SLOT+256*i}")
I("s_mov_b64 exec, -1")
I("s_waitcnt lgkmcnt(0)")
pk("add",52,52,56); pk("add",54,54,58)
pk("add",vACC,vACC,60); pk("add",vACC+2,vACC+2,62)
pk("add",vACC,vACC,52); pk("add",vACC+2,vACC+2,54)
I("v_subrev_u32 v49, 3, v49")
I("v_cmp_lt_i32 vcc, 0, v49")
I("s_cbranch_vccz K2_REDONE")
I("v_add_u32 v47, 768, v47")
for i in range(12): I(f"v_mov_b32 v{52+i}, 0")
I("s_branch K2_RED")
L("K2_REDONE")
I(f"v_readfirstlane_b32 s37, v{vT1}")
I("s_andn2_b32 s37, s37, s31")
I("s_cmp_lg_u32 s37, 0")
I("s_cbranch_scc1 K2_GOSAFE")
I("s_cmp_lg_u32 s55, 0")
I("s_cbranch_scc1 K2_NEXTSUB")
I(f"s_add_u32 s34, s34, {CAP}")
I("s_cmp_lt_u32 s34, s36")
I("s_cbranch_scc1 K2_NEXTROUND")
for i in range(4):
    I(f"v_add_f32 v{40+i}, v{vACC+i}, v{64+i}")
for i in range(4):
    I(f"v_mul_f32 v{44+i}, {hex(NEG_LOG2E)}, v{40+i}")
for i in range(4):
    I(f"v_exp_f32 v{44+i}, v{44+i}")
for i in range(4):
    I(f"v_add_f32 v{44+i}, 1.0, v{44+i}")
for i in range(4):
    I(f"v_rcp_f32 v{44+i}, v{44+i}")
for i in range(4):
    I(f"v_mul_f32 v{40+i}, v{40+i}, v{44+i}")
I("v_cvt_pk_bf16_f32 v44, v40, v41")
I("v_cvt_pk_bf16_f32 v45, v42, v43")
I(f"v_lshlrev_b32 v{vT0}, 3, v0")
I(f"v_lshrrev_b32 v{vT1}, 4, v0")
I("s_lshl_b32 s25, s10, 7")
I(f"v_cmp_gt_u32 vcc, s11, v{vT1}")
I("s_and_b64 exec, exec, vcc")
I("s_cbranch_execz K2_END0")
I(f"buffer_store_dwordx2 v[44:45], v{vT0}, s[20:23], s25 offen")
L("K2_END0")
if PROF:
    I("s_waitcnt vmcnt(0)")
    TS()
    prof_end(1,8,3,"K2_END",ts_n[0])
L("K2_END")
I("s_endpgm")
L("K2_GOSAFE")
I("s_mov_b32 s31, 1")
I("s_waitcnt vmcnt(0) lgkmcnt(0)")
I("s_barrier")
I("s_branch K2_RESTART")
L("K2_NEXTSUB")
I(f"s_add_u32 s35, s35, {NCAP}")
I("s_barrier")
I("s_branch K2_SUB")
L("K2_NEXTROUND")
I("s_barrier")
I("s_branch K2_ROUND")

def kd(name, vg, sg):
    out.append(f""".p2align 6
.amdhsa_kernel {name}
  .amdhsa_next_free_vgpr {vg}
  .amdhsa_next_free_sgpr {sg}
  .amdhsa_accum_offset {vg}
  .amdhsa_group_segment_fixed_size 0
  .amdhsa_kernarg_size 80
  .amdhsa_user_sgpr_count 2
  .amdhsa_user_sgpr_kernarg_segment_ptr 1
  .amdhsa_system_sgpr_workgroup_id_x 1
.end_amdhsa_kernel""")
out.append('.section .rodata,"a"')
kd("egc_bin_kernel",128,102 if PROF else 64)
kd("egc_main_kernel",128,102 if PROF else 80)
dst=sys.argv[1] if len(sys.argv)>1 else 'gather_scatter__edge_featured_mpnn_egc__graph.s'
open(dst,'w').write("\n".join(pad(out))+"\n")
```

```python
import sys, os
from asmlib import *
PROF=int(os.environ.get('PROF','0'))
ST=os.environ.get('ST','')
STT=os.environ.get('STT',''); STC=os.environ.get('STC','')
NOG=int(os.environ.get('NOG','0')); NOC=int(os.environ.get('NOC','0')); PF=int(os.environ.get('PF','0')); GF=os.environ.get('GF',''); GW=int(os.environ.get('GW','4'))
N=12500; E=800000; NB=49; NBK=256; C=250; CH=3200
TAB_OFF=0; WT_OFF=0x380000; REC_OFF=0x400000; CELL_OFF=0xB00000; FLG_OFF=0xB80000; WS_SZ=0xC00000
PRF_OFF=0x2000000
NTWG=98
LOG2E=1.4426950408889634
NEG_LOG2E=f32(-LOG2E)
PK=int(os.environ.get('PK','3')); DEG=int(os.environ.get('DEG','8')); YR=float(os.environ.get('YR','1.25')); PRIO=int(os.environ.get('PRIO','0'))
PFM=os.environ.get('PFM','ab'); NY=int(os.environ.get('NY','0'))
A=Asm(); I=A.I; L=A.L; out=A.out

def srd(d, plo, phi, size, add=0, stride=0):
    if add:
        I(f"s_add_u32 s{d}, s{plo}, {hex(add)}")
        I(f"s_addc_u32 s{d+1}, s{phi}, 0")
        I(f"s_and_b32 s{d+1}, s{d+1}, 0xffff")
    else:
        I(f"s_mov_b32 s{d}, s{plo}")
        I(f"s_and_b32 s{d+1}, s{phi}, 0xffff")
    if stride:
        I(f"s_or_b32 s{d+1}, s{d+1}, {hex(stride<<16)}")
    I(f"s_mov_b32 s{d+2}, {hex(size)}")
    I(f"s_mov_b32 s{d+3}, 0x20000")

def wave_scan(x, op="v_add_u32_dpp"):
    for sh in (1,2,4,8):
        I(f"{op} v{x}, v{x}, v{x} row_shr:{sh} row_mask:0xf bank_mask:0xf")
    I(f"{op} v{x}, v{x}, v{x} row_bcast:15 row_mask:0xa bank_mask:0xf")
    I(f"{op} v{x}, v{x}, v{x} row_bcast:31 row_mask:0xc bank_mask:0xf")

ts_n=[0]
def TS():
    if PROF:
        I(f"s_memtime s[{80+2*ts_n[0]}:{81+2*ts_n[0]}]"); ts_n[0]+=1
        if ts_n[0]>1: I("s_waitcnt lgkmcnt(0)")
def prof_start():
    if PROF:
        I("s_memrealtime s[98:99]")
def prof_end(kidx, wsl, wavereg, endlabel, nts):
    if not PROF: return
    I("s_memrealtime s[100:101]")
    I("s_waitcnt lgkmcnt(0)")
    I(f"s_cmp_lg_u32 s{wavereg}, {int(os.environ.get('PWV','0')) if kidx==1 else 0}")
    I(f"s_cbranch_scc1 {endlabel}")
    I(f"s_add_u32 s44, s{wsl}, {hex(PRF_OFF+kidx*0x10000)}")
    I(f"s_addc_u32 s45, s{wsl+1}, 0")
    I("s_and_b32 s45, s45, 0xffff")
    I("s_mov_b32 s46, 0x10000")
    I("s_mov_b32 s47, 0x20000")
    I("s_lshl_b32 s48, s2, 6")
    I("s_mov_b64 exec, 1")
    I("v_mov_b32 v50, 0")
    I("v_mov_b32 v51, s98")
    I("buffer_store_dword v51, v50, s[44:47], s48 offen offset:0")
    I("v_mov_b32 v52, s100")
    I("buffer_store_dword v52, v50, s[44:47], s48 offen offset:4")
    for i in range(1,nts):
        I(f"s_sub_u32 s49, s{80+2*i}, s80")
        I(f"v_mov_b32 v{52+i}, s49")
        I(f"buffer_store_dword v{52+i}, v50, s[44:47], s48 offen offset:{4+4*i}")

hdr=open('gather_scatter__edge_featured_mpnn_egc__graph.s.ref').read().splitlines()
for l in hdr:
    if l.startswith(';') and '@launch' not in l and 'Override' not in l and 'grid=ceil' not in l:
        out.append(l)
K1_LDS=27648
K2_LDS=144896
K1_GRID=C+NTWG+1
out.append(f"; @launch kernel=egc_bin_kernel grid=({K1_GRID},1,1) block=(512,1,1) lds={K1_LDS}")
out.append(f"; @launch kernel=egc_main_kernel grid=({NBK},1,1) block=(1024,1,1) lds={K2_LDS}")
if int(os.environ.get('DUP','0')): out.append(f"; @launch kernel=egc_main_kernel grid=({NBK},1,1) block=(1024,1,1) lds={K2_LDS}")
out.append('.amdgcn_target "amdgcn-amd-amdhsa--gfx950"')
out.append('.text')

out.append('.globl egc_bin_kernel'); out.append('.p2align 8'); out.append('.type egc_bin_kernel,@function')
L('egc_bin_kernel')
I("s_load_dwordx16 s[4:19], s[0:1], 0")
I("s_load_dwordx2 s[20:21], s[0:1], 72")
prof_start(); TS()
I(f"s_cmp_ge_u32 s2, {K1_GRID}")
I("s_cbranch_scc1 K1_END")
I("v_lshrrev_b32 v1, 6, v0")
I("v_and_b32 v2, 63, v0")
I("v_readfirstlane_b32 s3, v1")
I(f"s_cmp_lt_u32 s2, {NTWG+1}")
I("s_cbranch_scc1 K1_TABLE")
I(f"s_sub_u32 s51, s2, {NTWG+1}")
HIST=0; OFFT=1024; RECL=2048
I("s_cmp_ge_u32 s3, 7")
I("s_cbranch_scc1 K1_END")
I("s_mul_i32 s40, s51, 12800")
I("s_add_u32 s41, s40, 6400")
I("s_mul_i32 s42, s51, 6400")
I("s_add_u32 s43, s42, 3200")
I("v_lshlrev_b32 v3, 4, v0")
I("v_lshlrev_b32 v4, 3, v0")
I("v_cmp_gt_u32 vcc, 400, v0")
I("s_mov_b64 s[44:45], vcc")
I("s_mov_b64 exec, vcc")
I("s_waitcnt lgkmcnt(0)")
srd(24, 10,11, E*4)
DST=8; SRC=16; EA=24; BK=32; RK=40; W1=48
I(f"buffer_load_dwordx4 v[{DST}:{DST+3}], v3, s[24:27], s40 offen")
I(f"buffer_load_dwordx4 v[{DST+4}:{DST+7}], v3, s[24:27], s41 offen")
srd(28, 8,9, E*4)
srd(32, 6,7, E*2)
I(f"buffer_load_dwordx2 v[{EA}:{EA+1}], v4, s[32:35], s42 offen")
I(f"buffer_load_dwordx2 v[{EA+2}:{EA+3}], v4, s[32:35], s43 offen")
I(f"buffer_load_dwordx4 v[{SRC}:{SRC+3}], v3, s[28:31], s40 offen")
I(f"buffer_load_dwordx4 v[{SRC+4}:{SRC+7}], v3, s[28:31], s41 offen")
srd(36, 20,21, WS_SZ)
I("v_mov_b32 v5, 0")
I("v_lshlrev_b32 v6, 2, v0")
I("v_cmp_gt_u32 vcc, 256, v0")
I("s_mov_b64 exec, vcc")
I(f"ds_write_b32 v6, v5 offset:{HIST}")
I("s_mov_b64 exec, s[44:45]")
I("v_mov_b32 v7, 1")
I("s_mov_b32 s46, -49")
I("s_mov_b32 s47, 0xffff0000")
I("s_waitcnt lgkmcnt(0)")
I("s_barrier")
I("s_waitcnt vmcnt(4)")
TS()
for k in range(8):
    I(f"v_mul_u32_u24 v5, 21400, v{DST+k}")
    I(f"v_lshrrev_b32 v5, 20, v5")
    I(f"v_lshlrev_b32 v{BK+k}, 2, v5")
    I(f"ds_add_rtn_u32 v{RK+k}, v{BK+k}, v7 offset:{HIST}")
    I(f"v_mad_i32_i24 v{W1+k}, v5, s46, v{DST+k}")
I("s_waitcnt vmcnt(2)")
for k in range(8):
    ed=EA+k//2
    if k%2==0: I(f"v_lshlrev_b32 v{73+2*k}, 16, v{ed}")
    else:      I(f"v_and_b32 v{73+2*k}, s47, v{ed}")
I("s_waitcnt lgkmcnt(0)")
I("s_barrier")
TS()
I("s_mov_b64 exec, -1")
I("v_lshlrev_b32 v5, 4, v2")
I(f"ds_read_b128 v[56:59], v5 offset:{HIST}")
I("s_waitcnt lgkmcnt(0)")
I("v_add_u32 v60, v56, v57")
I("v_add_u32 v61, v60, v58")
I("v_add_u32 v62, v61, v59")
I("v_mov_b32 v63, v62")
wave_scan(63)
I("v_sub_u32 v64, v63, v62")
I("v_add_u32 v65, v64, v56")
I("v_add_u32 v66, v64, v60")
I("v_add_u32 v67, v64, v61")
I(f"ds_write_b128 v5, v[64:67] offset:{OFFT}")
I("s_cmp_lg_u32 s3, 0")
I("s_cbranch_scc1 K1_NOCELL")
I("s_and_b32 s48, s51, 7")
I("s_lshl_b32 s48, s48, 5")
I("s_lshr_b32 s49, s51, 3")
I("s_add_u32 s48, s48, s49")
I("s_lshl_b32 s48, s48, 2")
I(f"s_add_u32 s48, s48, {hex(CELL_OFF)}")
I("v_lshlrev_b32 v6, 12, v2")
for i in range(4):
    I(f"v_lshl_or_b32 v{68+i}, v{56+i}, 16, v{64+i}")
    I(f"buffer_store_dword v{68+i}, v6, s[36:39], s48 offen offset:{1024*i} {STC}")
L("K1_NOCELL")
I("s_mov_b64 exec, s[44:45]")
for k in range(8):
    I(f"ds_read_b32 v{BK+k}, v{BK+k} offset:{OFFT}")
I("s_waitcnt vmcnt(0)" if False else "s_nop 0")
for k in range(8):
    I(f"s_waitcnt lgkmcnt({7-k})")
    I(f"v_add_lshl_u32 v{BK+k}, v{BK+k}, v{RK+k}, 3")
I("s_cmp_lg_u32 s3, 0")
I("s_cbranch_scc1 K1_W0")
I("s_waitcnt vmcnt(4)")
I("s_branch K1_W1")
L("K1_W0")
I("s_waitcnt vmcnt(0)")
L("K1_W1")
for k in range(8):
    I(f"v_lshl_or_b32 v{72+2*k}, v{W1+k}, 24, v{SRC+k}")
    I(f"ds_write_b64 v{BK+k}, v[{72+2*k}:{73+2*k}] offset:{RECL}")
I("s_waitcnt lgkmcnt(0)")
I("s_barrier")
TS()
for i in range(4):
    I(f"ds_read_b128 v[{56+4*i}:{59+4*i}], v3 offset:{RECL+6400*i}")
I("s_mul_i32 s48, s51, 25600")
I(f"s_add_u32 s48, s48, {hex(REC_OFF)}")
for i in range(4):
    I(f"s_waitcnt lgkmcnt({3-i})")
    I(f"buffer_store_dwordx4 v[{56+4*i}:{59+4*i}], v3, s[36:39], s48 offen {ST}")
    if i<3: I("s_add_u32 s48, s48, 6400")
if PROF:
    I("s_waitcnt vmcnt(0)")
    TS()
    I("s_branch K1_PROF")
else:
    I("s_endpgm")

L("K1_TABLE")
ts_n[0]=1
I(f"s_mov_b32 s22, s2")
I("v_and_b32 v3, 31, v0")
I("v_bfe_u32 v4, v0, 5, 3")
I("v_lshlrev_b32 v5, 10, v4")
I("v_lshl_add_u32 v5, v3, 2, v5")
I("s_lshr_b32 s40, s3, 2")
I("s_waitcnt lgkmcnt(0)")
I("s_add_u32 s28, s16, 8192")
I("s_addc_u32 s29, s17, 0")
I(f"s_cmp_eq_u32 s22, {NTWG}")
I("s_cselect_b32 s28, s16, s28")
I("s_cselect_b32 s29, s17, s29")
I("s_cselect_b32 s30, s12, s14")
I("s_cselect_b32 s31, s13, s15")
I("s_cmp_eq_u32 s40, 1")
I("s_cselect_b32 s28, s30, s28")
I("s_cselect_b32 s29, s31, s29")
I("s_and_b32 s29, s29, 0xffff")
I("s_mov_b32 s30, 8192")
I("s_mov_b32 s31, 0x20000")
RAW=16
for i in range(8):
    I(f"buffer_load_dword v{RAW+i}, v5, s[28:31], 0 offen offset:{i*128}")
srd(24, 4,5, N*128)
I("s_and_b32 s23, s3, 3")
I("s_lshl_b32 s41, s22, 2")
I("s_add_u32 s41, s41, s23")
XO=96
I("v_lshrrev_b32 v10, 5, v2")
I("s_lshl_b32 s43, s41, 5")
I("v_add_u32 v6, s43, v3")
I("v_lshlrev_b32 v7, 7, v6")
I("v_lshl_add_u32 v7, v10, 4, v7")
for s in range(4):
    I(f"buffer_load_dwordx4 v[{XO+4*s}:{XO+4*s+3}], v7, s[24:27], 0 offen offset:{32*s}")
I("s_mov_b32 s44, 0x05040100")
I("s_mov_b32 s45, 0x07060302")
I("v_and_b32 v8, 15, v3")
I("v_bfe_u32 v9, v8, 1, 2")
I("v_lshlrev_b32 v9, 3, v9")
I("v_lshrrev_b32 v11, 3, v8")
I("v_lshl_add_u32 v9, v11, 2, v9")
I("v_and_b32 v11, 1, v8")
I("v_lshl_add_u32 v9, v11, 1, v9")
I("v_lshlrev_b32 v11, 1, v8")
I("v_lshrrev_b32 v12, 4, v3")
I("v_lshlrev_b32 v12, 12, v12")
I("v_lshl_add_u32 v12, v4, 9, v12")
I("s_lshl_b32 s46, s40, 13")
I("v_add_u32 v12, s46, v12")
I("v_lshl_add_u32 v9, v9, 4, v12")
I("v_lshl_add_u32 v11, v11, 4, v12")
I("s_waitcnt vmcnt(4)")
for r in range(4):
    I(f"v_perm_b32 v{32+r}, v{RAW+2*r+1}, v{RAW+2*r}, s44")
    I(f"v_perm_b32 v{36+r}, v{RAW+2*r+1}, v{RAW+2*r}, s45")
I(f"s_cmp_eq_u32 s22, {NTWG}")
I("s_cbranch_scc0 K1_TAB2")
srd(36, 20,21, 16384, add=WT_OFF)
I(f"buffer_store_dwordx4 v[32:35], v11, s[36:39], 0 offen {ST}")
I(f"buffer_store_dwordx4 v[36:39], v11, s[36:39], 0 offen offset:16 {ST}")
I("s_endpgm")
L("K1_TAB2")
I(f"ds_write_b128 v9, v[32:35]")
I(f"ds_write_b128 v9, v[36:39] offset:16")
I("v_lshlrev_b32 v8, 4, v2")
I("s_lshl_b32 s46, s40, 12")
I("v_add_u32 v9, s46, v8")
I("v_lshlrev_b32 v7, 8, v6")
I("v_lshl_add_u32 v7, v10, 6, v7")
I("s_lshl_b32 s42, s40, 7")
srd(36, 20,21, 12512*256, add=TAB_OFF)
I(f"s_mov_b32 s44, {hex(NEG_LOG2E)}")
I("s_mov_b32 s45, 0x7fffffff")
I("s_mov_b32 s46, 0x80000000")
I("s_mov_b32 s47, 0x7fff0000")
I(f"v_mov_b32 v10, {hex(0x7f7f0000)}")
I(f"v_mov_b32 v11, {hex(0xff7f0000)}")
I("v_mov_b32 v12, 0")
I("s_waitcnt lgkmcnt(0)")
I("s_barrier")
OPS=48
for mm in range(2):
    for s in range(4):
        I(f"ds_read_b128 v[{OPS+16*mm+4*s}:{OPS+16*mm+4*s+3}], v9 offset:{mm*8192+s*1024}")
I("s_waitcnt vmcnt(0)")
TS()
QA=16; VA=32
for mm in range(2):
    for s in range(4):
        I(f"s_waitcnt lgkmcnt({7-(mm*4+s)})")
        a=QA+16*mm
        cc = "0" if s==0 else f"v[{a}:{a+15}]"
        I(f"v_mfma_f32_32x32x16_bf16 v[{a}:{a+15}], v[{OPS+16*mm+4*s}:{OPS+16*mm+4*s+3}], v[{XO+4*s}:{XO+4*s+3}], {cc}")
def fit(dst, val, g, t1, t2):
    I(f"v_med3_f32 v{val}, v{val}, v10, v11")
    I(f"v_and_b32 v{t1}, s45, v{val}")
    I(f"v_add_u32 v{t1}, 0x8000, v{t1}")
    I(f"v_sub_u32 v{t1}, v{t1}, v{g} clamp")
    I(f"v_and_or_b32 v{t2}, v{val}, s46, v{g}")
    I(f"v_bfi_b32 v{dst}, s47, v{t1}, v{t2}")
I("v_mov_b32 v13, 0")
I("v_mov_b32 v14, -1")
I("s_mov_b32 s48, 0x07060100")
for r in range(16):
    I(f"v_mul_f32 v{QA+r}, s44, v{QA+r}")
O=80; EX=48; TT=64
for r in range(16):
    I(f"v_exp_f32 v{EX+r}, v{QA+r}")
    if r%2==1: I(f"v_max3_f32 v13, abs(v{QA+r-1}), abs(v{QA+r}), v13")
for r in range(16):
    I(f"v_lshl_add_u32 v{TT+r}, v{VA+r}, 1, -1")
    I(f"v_cvt_f16_f32 v{EX+r}, v{EX+r}")
    if r%2==1:
        I(f"v_max3_f32 v12, abs(v{VA+r-1}), abs(v{VA+r}), v12")
        I(f"v_min3_u32 v14, v{TT+r-1}, v{TT+r}, v14")
I(f"v_mov_b32 v15, {hex(f32(2.0**40))}")
I("v_cmp_nlt_f32 vcc, v12, v15")
I(f"v_mov_b32 v15, {hex(f32(14.0))}")
I("v_cmp_nle_f32 s[50:51], v13, v15")
I(f"v_mov_b32 v15, {hex(f32(2.0**-80)<<1)}")
I("v_cmp_lt_u32 s[56:57], v14, v15")
I("s_or_b64 vcc, vcc, s[50:51]")
I("s_or_b64 vcc, vcc, s[56:57]")
I("s_cmp_lg_u64 vcc, 0")
I("s_cselect_b32 s58, 1, 0")
I("s_cbranch_scc1 K1_TSLOW")
for g in range(4):
    for i in range(4):
        r=4*g+i
        I(f"v_add_u32 v{TT+r}, 0x8000, v{VA+r}")
    for i in range(4):
        r=4*g+i
        I(f"v_sub_u32_sdwa v{TT+r}, v{TT+r}, v{EX+r} dst_sel:DWORD dst_unused:UNUSED_PAD src0_sel:DWORD src1_sel:WORD_0")
    for i in range(4):
        r=4*g+i
        I(f"v_perm_b32 v{O+r}, v{TT+r}, v{EX+r}, s48")
    I(f"buffer_store_dwordx4 v[{O+4*g}:{O+4*g+3}], v7, s[36:39], s42 offen offset:{16*g} {STT}")
I("s_branch K1_TFLAG")
L("K1_TSLOW")
I(f"v_mov_b32 v15, {hex(f32(14.0))}")
for r in range(16):
    t=TT+r
    I(f"v_mul_f32 v{t}, 0.25, abs(v{QA+r})" if False else f"v_mul_f32_e64 v{t}, abs(v{QA+r}), 0.5")
    I(f"v_mul_f32 v{t}, 0.5, v{t}")
    I(f"v_cvt_f16_f32 v{t}, v{t}")
    I(f"v_and_b32 v{t}, 0x3fff, v{t}")
    I(f"v_lshrrev_b32 v112, 17, v{QA+r}")
    I(f"v_and_b32 v112, 0x4000, v112")
    I(f"v_or_b32 v{t}, v{t}, v112")
    I(f"v_or_b32 v{t}, 0x8000, v{t}")
    I(f"v_and_b32 v{EX+r}, 0xffff, v{EX+r}")
    I(f"v_cmp_le_f32_e64 vcc, abs(v{QA+r}), v15")
    I(f"v_cndmask_b32 v{t}, v{t}, v{EX+r}, vcc")
    fit(O+r, VA+r, t, 113, 114)
for g in range(4):
    I(f"buffer_store_dwordx4 v[{O+4*g}:{O+4*g+3}], v7, s[36:39], s42 offen offset:{16*g} {STT}")
L("K1_TFLAG")
I("s_lshl_b32 s49, s41, 1")
I("s_lshr_b32 s50, s3, 2")
I("s_add_u32 s49, s49, s50")
srd(52, 20,21, 784, add=FLG_OFF)
I("v_mov_b32 v13, s58")
I("v_mov_b32 v14, 0")
I("s_mov_b64 exec, 1")
I(f"buffer_store_byte v13, v14, s[52:55], s49 offen {ST}")
if PROF:
    TS()
    I("s_waitcnt vmcnt(0)")
    TS(); TS()
    L("K1_PROF")
    prof_end(0,20,3,"K1_END",5)
L("K1_END")
I("s_endpgm")

import numpy as np
def polyfit(deg,Y,iters=300):
    x=np.cos(np.pi*(np.arange(4001)+0.5)/4001)*Y
    Am=np.stack([x**k for k in range(1,deg+1)],1)/np.exp(x)[:,None]
    b=(np.exp(x)-1)/np.exp(x)
    w=np.ones_like(x)
    for it in range(iters):
        p=np.linalg.lstsq(Am*w[:,None],b*w,rcond=None)[0]
        r=np.abs(Am@p-b)
        w=w*(r/r.max()+1e-3)**0.5; w/=w.max()
    return p
PC=polyfit(DEG,YR)
ts_n[0]=0
CNT=0; MISC=256; XS=1024; US=XS+16384; SLOT=US+16384; NSLOT=114; LIST=SLOT+NSLOT*256; LEND=LIST+81920
assert LEND==K2_LDS
CAP=40; NLD=5
out.append('.globl egc_main_kernel'); out.append('.p2align 8'); out.append('.type egc_main_kernel,@function')
L('egc_main_kernel')
I("s_load_dwordx4 s[4:7], s[0:1], 48")
I("s_load_dwordx2 s[8:9], s[0:1], 72")
I("s_load_dwordx2 s[52:53], s[0:1], 0")
prof_start(); TS()
I(f"s_cmp_ge_u32 s2, {NBK}")
I("s_cbranch_scc1 K2_END")
vLANE=1; vCELL=2; vSEGA=3; vNS=4; vNQ=5; vJ16=6; vSc=7; vLA=8; vEA=9; vACC=10; vB=14; vTHR=22; vT0=23; vT1=24; vT2=25; vM=26; vPF=27
IDXR=28; NX=[36,37]; EV=[38,39]; AP=40; SA=[42,43]; XR=[44,48]; AC=52; ER=[56,60]; CC=56; vM2=60; vN2=61; A1=62; A2=63; F=64; GS=[80,96]; T=112
REC=28; AR=48; RK=58; XO=96; WO=112; MACC=64; vFL=78; vCR=68; vCNTR=70; ZR=72
vC=vB
MSK=60; KM2=46; KM1=48; sSC=55
SCL=8
NG=0 if NOG else 4
I(f"v_and_b32 v{vLANE}, 63, v0")
I(f"v_lshrrev_b32 v{vT0}, 6, v0")
I(f"v_and_b32 v{vJ16}, 15, v0")
I(f"v_readfirstlane_b32 s3, v{vT0}")
I("s_and_b32 s51, s2, 7")
I("s_lshl_b32 s51, s51, 5")
I("s_lshr_b32 s54, s2, 3")
I("s_add_u32 s51, s51, s54")
I("s_lshl_b32 s24, s51, 10")
I(f"s_add_u32 s24, s24, {hex(CELL_OFF)}")
I(f"v_lshrrev_b32 v{vT0}, 2, v0")
I(f"v_and_b32 v{vT1}, 31, v{vT0}")
I(f"v_lshrrev_b32 v{vT2}, 5, v{vT0}")
I(f"v_lshl_add_u32 v{vT1}, v{vT1}, 3, v{vT2}")
I(f"v_and_b32 v{vT0}, 0x3fc, v0")
I(f"v_mov_b32 v{vT2}, 0x7f000000")
I(f"v_cmp_gt_u32 vcc, {C}, v{vT1}")
I(f"v_mul_u32_u24 v{vSEGA}, 25600, v{vT1}")
I(f"v_cndmask_b32 v{vT0}, v{vT2}, v{vT0}, vcc")
I(f"v_bfe_u32 v{vT1}, v0, 4, 2")
I(f"v_lshlrev_b32 v{vCR}, 3, v{vJ16}")
I(f"v_add_u32 v{vCR}, 16384, v{vCR}")
I("s_waitcnt lgkmcnt(0)")
if PROF==2: TS()
srd(16, 8,9, WS_SZ)
I(f"buffer_load_dword v{vCELL}, v{vT0}, s[16:19], s24 offen")
I(f"global_load_dwordx2 v[{vCR}:{vCR+1}], v{vCR}, s[4:5]")
I(f"v_cmp_le_u32 s[{KM2}:{KM2+1}], 2, v{vT1}")
I(f"v_and_b32 v{vT1}, 1, v{vT1}")
I(f"v_cmp_eq_u32 s[{KM1}:{KM1+1}], 1, v{vT1}")
I(f"v_lshlrev_b32 v{vJ16}, 4, v{vJ16}")
I(f"s_mul_i32 s10, s51, {NB}")
I(f"s_sub_u32 s11, {N}, s10")
I(f"s_min_u32 s11, s11, {NB}")
I(f"v_and_b32 v{vT0}, 3, v0")
I(f"v_lshl_add_u32 v{vSEGA}, v{vT0}, 4, v{vSEGA}")
srd(56, 52,53, N*128)
I("s_mov_b32 s31, 0")
I("s_mov_b32 s50, 1")
srd(12, 8,9, N, add=TAB_OFF, stride=256)
srd(20, 6,7, N*128)
I(f"v_lshrrev_b32 v{vSc}, 4, v0")
I(f"v_lshl_add_u32 v{vSc}, v{vSc}, 8, v{vJ16}")
L("K2_RESTART")
for i in range(4): I(f"v_mov_b32 v{vACC+i}, 0")
I("s_mov_b32 s34, 0")
L("K2_ROUND")
for i in range(4): I(f"v_mov_b32 v{ZR+i}, 0")
I(f"v_lshlrev_b32 v{vT0}, 4, v0")
I(f"ds_write_b128 v{vT0}, v[{ZR}:{ZR+3}] offset:{SLOT}")
I(f"v_min_u32 v{vT1}, {NSLOT*256-16384-16}, v{vT0}")
I(f"ds_write_b128 v{vT1}, v[{ZR}:{ZR+3}] offset:{SLOT+16384}")
I(f"v_lshlrev_b32 v{vT1}, 2, v{vLANE}")
I("s_cmp_lg_u32 s3, 0")
I("s_cbranch_scc1 K2_NOZ")
I(f"ds_write_b32 v{vT1}, v{ZR} offset:{CNT}")
I("s_cmp_eq_u32 s50, 0")
I("s_cbranch_scc1 K2_NOZ")
I(f"ds_write_b32 v{vT1}, v{ZR} offset:{MISC}")
L("K2_NOZ")
I(f"v_and_b32 v{vT1}, 3, v0")
I(f"v_lshlrev_b32 v{vT1}, 1, v{vT1}")
I("s_lshl_b32 s36, s34, 3")
I(f"s_add_u32 s36, s36, {hex(REC_OFF)}")
I("s_cmp_eq_u32 s50, 0")
I("s_cbranch_scc1 K2_NOFIRST")
I("s_waitcnt vmcnt(1)")
if PROF==2: TS()
I(f"v_and_b32 v{vT0}, 0xffff, v{vCELL}")
I(f"v_lshl_add_u32 v{vSEGA}, v{vT0}, 3, v{vSEGA}")
I(f"v_lshrrev_b32 v{vCELL}, 16, v{vCELL}")
L("K2_NOFIRST")
I(f"v_subrev_u32 v{vCNTR}, s34, v{vCELL}")
I(f"v_sub_u32 v{vCNTR}, v{vCNTR}, v{vT1}")
for k in range(NLD):
    I(f"v_cmp_lt_i32 s[{MSK+4*k}:{MSK+4*k+1}], {8*k}, v{vCNTR}")
for k in range(NLD):
    I(f"s_mov_b64 exec, s[{MSK+4*k}:{MSK+4*k+1}]")
    I(f"s_cbranch_execz K2_LW{k}")
    I(f"buffer_load_dwordx4 v[{REC+4*k}:{REC+4*k+3}], v{vSEGA}, s[16:19], s36 offen offset:{64*k}")
I(f"s_waitcnt vmcnt({NLD})")
I("s_branch K2_LDONE")
for k in range(NLD):
    L(f"K2_LW{k}")
    I(f"s_waitcnt vmcnt({k})")
    if k<NLD-1: I("s_branch K2_LDONE")
L("K2_LDONE")
I("s_mov_b64 exec, -1")
for k in range(NLD):
    I(f"v_cmp_lt_i32 s[{MSK+4*k+2}:{MSK+4*k+3}], {8*k+1}, v{vCNTR}")
I("s_waitcnt lgkmcnt(0)")
I("s_barrier")
TS()
I("s_cmp_lg_u32 s34, 0")
I("s_cbranch_scc1 K2_NOXW")
I("s_cmp_ge_u32 s3, 8")
I("s_cbranch_scc1 K2_LDFL")
I(f"v_and_b32 v{vT0}, 31, v0")
I(f"v_bfe_u32 v{vT1}, v0, 5, 1")
I("s_and_b32 s25, s3, 1")
I("s_lshl_b32 s25, s25, 5")
I("s_add_u32 s25, s25, s10")
I("s_lshl_b32 s25, s25, 7")
I(f"v_lshlrev_b32 v{vT0}, 7, v{vT0}")
I(f"v_lshl_add_u32 v{vT0}, v{vT1}, 4, v{vT0}")
for s in range(4):
    I(f"buffer_load_dwordx4 v[{XO+4*s}:{XO+4*s+3}], v{vT0}, s[56:59], s25 offen offset:{32*s}")
I("s_lshr_b32 s26, s3, 1")
I("s_lshl_b32 s26, s26, 12")
I(f"s_add_u32 s26, s26, {hex(WT_OFF)}")
I(f"v_lshlrev_b32 v{vT0}, 4, v{vLANE}")
for s in range(4):
    I(f"buffer_load_dwordx4 v[{WO+4*s}:{WO+4*s+3}], v{vT0}, s[16:19], s26 offen offset:{1024*s}")
def pfy(d):
    if NY:
        I(f"v_lshlrev_b32 v{vPF}, 4, v0")
        I(f"s_mul_i32 s38, s54, {782*128}")
        I(f"s_add_u32 s38, s38, {len(PFM)*16384}")
        for _ in range(NY):
            I(f"buffer_load_dwordx4 v[{d}:{d+3}], v{vPF}, s[16:19], s38 offen")
            I(f"s_add_u32 s38, s38, 16384")
pfy(76)
I("s_branch K2_NOXW")
L("K2_LDFL")
I(f"v_subrev_u32 v{vFL}, 512, v0")
I(f"v_cmp_gt_u32 vcc, 196, v{vFL}")
I(f"v_lshlrev_b32 v{vFL}, 2, v{vFL}")
I(f"v_mov_b32 v{vT2}, 0x7f000000")
I(f"s_mov_b32 s30, {hex(FLG_OFF)}")
I(f"v_cndmask_b32 v{vFL}, v{vT2}, v{vFL}, vcc")
I(f"buffer_load_dword v{vFL}, v{vFL}, s[16:19], s30 offen")
pfy(96)
if PF==4:
    I(f"v_subrev_u32 v{vT0}, 512, v0")
    I(f"v_min_u32 v{vT0}, 390, v{vT0}")
    I(f"v_lshlrev_b32 v{vT0}, 8, v{vT0}")
    I(f"s_mul_i32 s37, s54, {782*128}")
    for o in [0,64,128,192]:
        I(f"buffer_load_dword v{vPF}, v{vT0}, s[16:19], s37 offen offset:{o}")
if PF==5:
    I(f"v_subrev_u32 v{vT0}, 512, v0")
    I(f"v_lshlrev_b32 v{vT0}, 4, v{vT0}")
    I(f"s_mul_i32 s37, s54, {782*128}")
    for o in range(12):
        I(f"buffer_load_dwordx4 v[96:99], v{vT0}, s[16:19], s37 offen")
        I(f"s_add_u32 s37, s37, 8192")
L("K2_NOXW")
I("s_cmp_eq_u32 s50, 0")
I("s_cbranch_scc1 K2_NOFIRST2")
I(f"v_cmp_lt_u32 vcc, {CAP}, v{vCELL}")
I("s_and_saveexec_b64 s[32:33], vcc")
I("s_cbranch_execz K2_NOMAX")
I(f"v_mov_b32 v{vT0}, 0")
I(f"ds_max_u32 v{vT0}, v{vCELL} offset:{MISC}")
L("K2_NOMAX")
I("s_mov_b64 exec, -1")
Z=80
I(f"v_lshlrev_b32 v{Z}, 16, v{vCR}")
I(f"v_and_b32 v{Z+1}, 0xffff0000, v{vCR}")
I(f"v_lshlrev_b32 v{Z+2}, 16, v{vCR+1}")
I(f"v_and_b32 v{Z+3}, 0xffff0000, v{vCR+1}")
I(f"v_and_b32 v84, 0x7fffffff, v{Z}")
I(f"v_and_b32 v85, 0x7fffffff, v{Z+1}")
I(f"v_and_b32 v86, 0x7fffffff, v{Z+2}")
I(f"v_and_b32 v87, 0x7fffffff, v{Z+3}")
I(f"v_max3_u32 v{vT0}, v84, v85, v86")
I(f"v_max_u32 v{vT0}, v{vT0}, v87")
for sh in (1,2,4,8):
    I(f"v_max_u32_dpp v{vT0}, v{vT0}, v{vT0} row_shr:{sh} row_mask:0xf bank_mask:0xf")
PCX=list(PC)+[0.0]*(8-DEG)
sc=2.0**(SCL-2)
I(f"v_mov_b32 v84, {hex(f32(PCX[0]*sc))}")
I(f"v_mov_b32 v85, {hex(f32(PCX[1]*sc))}")
I(f"v_mov_b32 v86, {hex(f32(PCX[2]*sc))}")
I(f"v_mov_b32 v87, {hex(f32(PCX[3]*sc))}")
I(f"v_mov_b32 v88, {hex(f32(PCX[4]*sc))}")
I(f"v_mov_b32 v89, {hex(f32(PCX[5]*sc))}")
I(f"v_mov_b32 v90, {hex(f32(PCX[6]*sc))}")
I(f"v_mov_b32 v91, {hex(f32(PCX[7]*sc))}")
I(f"v_readlane_b32 s37, v{vT0}, 15")
I(f"v_cndmask_b32 v84, v84, v85, s[{KM1}:{KM1+1}]")
I(f"v_cndmask_b32 v86, v86, v87, s[{KM1}:{KM1+1}]")
I(f"v_cndmask_b32 v88, v88, v89, s[{KM1}:{KM1+1}]")
I(f"v_cndmask_b32 v90, v90, v91, s[{KM1}:{KM1+1}]")
I(f"v_rcp_f32 v{vTHR}, s37")
I(f"v_cndmask_b32 v84, v84, v86, s[{KM2}:{KM2+1}]")
I(f"v_cndmask_b32 v85, v88, v90, s[{KM2}:{KM2+1}]")
I(f"v_mul_f32 v{vTHR}, {hex(f32(YR*(1-1e-5)))}, v{vTHR}")
I(f"v_min_f32 v{vTHR}, {hex(f32(1024.0))}, v{vTHR}")
I(f"v_max_f32 v{vTHR}, {hex(f32(2.0**-12))}, v{vTHR}")
I(f"v_readfirstlane_b32 s25, v{vTHR}")
I("s_add_u32 s25, s25, 0x7fffff")
I("s_and_b32 s25, s25, 0x7f800000")
I(f"s_sub_u32 s{sSC}, {hex(254<<23)}, s25")
I("s_or_b32 s25, s25, 0x80000000")
for i in range(4):
    I(f"v_mul_f32 v{Z+i}, s25, v{Z+i}")
for i in range(4):
    z=Z+i
    I(f"v_mul_f32 v86, v{z}, v{z}")
    I(f"v_cndmask_b32 v87, 1.0, v86, s[{KM2}:{KM2+1}]")
    I(f"v_cndmask_b32 v88, v{z}, v86, s[{KM1}:{KM1+1}]")
    I(f"v_mul_f32 v86, v86, v86")
    I(f"v_mul_f32 v87, v87, v88")
    I(f"v_mul_f32 v86, v86, v87")
    I(f"v_mul_f32 v87, v87, v84")
    I(f"v_mul_f32 v86, v86, v85")
    I(f"v_cvt_pkrtz_f16_f32 v{vB+2*i}, v87, v87")
    I(f"v_fma_mix_f32 v87, v{vB+2*i}, -1.0, v87 op_sel_hi:[1,0,0]")
    I(f"v_cvt_f16_f32 v86, v86")
    I(f"v_cvt_f16_f32 v87, v87")
    I(f"v_pack_b32_f16 v{vB+2*i+1}, v87, v86")
I(f"s_cmp_le_u32 s37, {hex(f32(1024.0))}")
I("s_cbranch_scc1 K2_NOFIRST2")
I(f"v_mov_b32 v{vTHR}, -1.0")
L("K2_NOFIRST2")
I(f"v_mov_b32 v{vM}, 0")
I(f"v_mov_b32 v{vT2}, 1")
I("s_cmp_lg_u32 s34, 0")
I("s_cbranch_scc1 K2_RW0")
I("s_cmp_ge_u32 s3, 8")
I("s_cbranch_scc1 K2_RW1")
I(f"s_waitcnt vmcnt({8+NY})")
I("s_branch K2_RW2")
L("K2_RW1")
I(f"s_waitcnt vmcnt({1+NY+{4:4,5:12}.get(PF,0)})")
if PF in (2,3):
    I(f"v_subrev_u32 v{vT0}, 512, v0")
    I(f"v_min_u32 v{vT0}, 390, v{vT0}")
    I(f"v_lshlrev_b32 v{vT0}, 8, v{vT0}")
    I(f"s_mul_i32 s37, s54, {782*128}")
    for o in ([0,128] if PF==2 else [0,64,128,192]):
        I(f"buffer_load_dword v{vPF}, v{vT0}, s[16:19], s37 offen offset:{o}")
I("s_branch K2_RW2")
L("K2_RW0")
I("s_waitcnt vmcnt(0)")
L("K2_RW2")
TS()
I("s_mov_b32 s50, 0")
npf=[0]
def pf(tag):
    for _ in range(PFM.count(tag)):
        if npf[0]==0:
            I(f"v_lshlrev_b32 v{vPF}, 4, v0")
            I(f"s_mul_i32 s38, s54, {782*128}")
        I(f"buffer_load_dwordx4 v[80:83], v{vPF}, s[16:19], s38 offen")
        I(f"s_add_u32 s38, s38, 16384")
        npf[0]+=1
pf('a')
for r in range(2*NLD):
    I(f"s_mov_b64 exec, s[{MSK+2*r}:{MSK+2*r+1}]")
    if r%2==0: I(f"s_cbranch_execz K2_HDONE")
    I(f"v_lshrrev_b32 v{AR+r}, 22, v{REC+2*r}")
    I(f"v_max_f32_e64 v{vM}, abs(v{REC+2*r+1}), v{vM}")
    I(f"ds_add_rtn_u32 v{RK+r}, v{AR+r}, v{vT2} offset:{CNT}")
L("K2_HDONE")
I("s_mov_b64 exec, -1")
I(f"v_cmp_gt_f32 vcc, v{vM}, v{vTHR}")
I("s_and_saveexec_b64 s[32:33], vcc")
I("s_cbranch_execz K2_NOBAD3")
I(f"v_mov_b32 v{vT0}, 0")
I(f"ds_write_b32 v{vT0}, v{vT2} offset:{MISC+4}")
L("K2_NOBAD3")
I("s_mov_b64 exec, -1")
I(f"v_lshlrev_b32 v{vT0}, 2, v{vLANE}")
I(f"v_mov_b32 v{vT1}, 0")
pf('b')
I("s_waitcnt lgkmcnt(0)")
if PROF==2: TS()
I("s_barrier")
TS()
vCN=72; vBASE=73
I(f"ds_read_b32 v{vCN}, v{vT0} offset:{CNT}")
I(f"ds_read_b64 v[74:75], v{vT1} offset:{MISC}")
pf('c')
I("s_waitcnt lgkmcnt(1)")
I(f"v_add_u32 v{vNQ}, 3, v{vCN}")
I(f"v_lshrrev_b32 v{vNQ}, 2, v{vNQ}")
I(f"v_mov_b32 v{vNS}, v{vNQ}")
wave_scan(vNS)
I(f"v_readlane_b32 s39, v{vNS}, 63")
I(f"v_sub_u32 v{vNS}, v{vNS}, v{vNQ}")
I(f"v_lshlrev_b32 v{vBASE}, 5, v{vNS}")
for r in range(2*NLD):
    if r%2==0:
        I(f"s_cmp_eq_u64 s[{MSK+2*r}:{MSK+2*r+1}], 0")
        I(f"s_cbranch_scc1 K2_PDONE")
    I(f"ds_bpermute_b32 v{AR+r}, v{AR+r}, v{vBASE}")
L("K2_PDONE")
pf('d')
I("s_add_u32 s40, s39, 3")
I("s_lshr_b32 s40, s40, 2")
I("s_lshr_b32 s42, s40, 4")
I("s_and_b32 s43, s40, 15")
I("s_mul_i32 s44, s3, s42")
I("s_min_u32 s45, s3, s43")
I("s_add_u32 s44, s44, s45")
I("s_lshl_b32 s44, s44, 7")
I("s_cmp_lt_u32 s3, s43")
I("s_addc_u32 s40, s42, 0")
I("s_lshl_b32 s45, s40, 5")
I(f"v_bfe_u32 v{vLA}, v0, 4, 2")
I(f"v_mul_u32_u24 v{vLA}, s45, v{vLA}")
I(f"v_add_u32 v{vLA}, s44, v{vLA}")
I(f"v_bfe_u32 v{vEA}, v0, 2, 2")
I(f"v_mul_u32_u24 v{vEA}, s45, v{vEA}")
I(f"v_and_b32 v{vT1}, 3, v0")
I(f"v_lshl_add_u32 v{vEA}, v{vT1}, 3, v{vEA}")
I(f"v_add_u32 v{vEA}, s44, v{vEA}")
I("s_waitcnt lgkmcnt(0)")
I("v_readfirstlane_b32 s36, v74")
I("v_readfirstlane_b32 s37, v75")
for r in range(2*NLD):
    I(f"s_mov_b64 exec, s[{MSK+2*r}:{MSK+2*r+1}]")
    if r%2==0: I(f"s_cbranch_execz K2_SDONE")
    I(f"v_lshl_add_u32 v{AR+r}, v{RK+r}, 3, v{AR+r}")
    I(f"ds_write_b64 v{AR+r}, v[{REC+2*r}:{REC+2*r+1}] offset:{LIST}")
L("K2_SDONE")
I("s_mov_b64 exec, -1")
pf('e')
I("s_cmp_lt_u32 s3, 12")
I("s_cbranch_scc1 K2_NOPAD")
I("v_mov_b32 v77, 0")
I("s_cmp_eq_u32 s3, 15")
I("s_cbranch_scc1 K2_TPAD")
I("s_sub_u32 s25, s3, 12")
I(f"v_add_u32 v74, s25, v{vCN}")
I(f"v_lshlrev_b32 v75, 2, v{vNQ}")
I(f"v_cmp_lt_u32 vcc, v74, v75")
I(f"v_lshl_add_u32 v74, v74, 3, v{vBASE}")
I(f"v_lshlrev_b32 v76, 24, v{vLANE}")
I(f"v_or_b32 v76, {N}, v76")
I("s_mov_b64 exec, vcc")
I(f"ds_write_b64 v74, v[76:77] offset:{LIST}")
I("s_mov_b64 exec, -1")
I("s_branch K2_NOPAD")
L("K2_TPAD")
I("s_lshl_b32 s25, s39, 5")
I(f"v_lshl_add_u32 v74, v{vLANE}, 3, s25")
I(f"v_mov_b32 v76, {hex(N|(NB<<24))}")
I(f"ds_write_b64 v74, v[76:77] offset:{LIST}")
L("K2_NOPAD")
I("s_andn2_b32 s37, s37, s31")
I("s_cmp_lg_u32 s37, 0")
I("s_cbranch_scc1 K2_GOSAFE")
I("s_waitcnt lgkmcnt(0)")
if PROF==2: TS()
I("s_barrier")
TS()
def gather(n):
    if NOG: return
    for k in range(4):
        I(f"buffer_load_dwordx4 v[{GS[n]+4*k}:{GS[n]+4*k+3}], v[{IDXR+2*k}:{IDXR+2*k+1}], s[12:15], 0 idxen offen {GF}")
for k in range(4):
    I(f"ds_read_u16 v{IDXR+2*k}, v{vLA} offset:{LIST+8*k}")
for k in range(4):
    I(f"v_mov_b32 v{IDXR+2*k+1}, v{vJ16}")
I("s_cmp_eq_u32 s40, 0")
I("s_cbranch_scc1 K2_NOG0")
I("s_waitcnt lgkmcnt(0)")
gather(0)
I("s_branch K2_G0D")
L("K2_NOG0")
I("s_waitcnt vmcnt(0)")
L("K2_G0D")
I("s_cmp_lg_u32 s34, 0")
I("s_cbranch_scc1 K2_NOMM2")
I("s_cmp_ge_u32 s3, 8")
I("s_cbranch_scc1 K2_FLCHK")
I(f"v_and_b32 v{vT0}, 31, v0")
I(f"v_bfe_u32 v{vT1}, v0, 5, 1")
I(f"v_lshlrev_b32 v{vT0}, 2, v{vT0}")
I(f"v_lshl_add_u32 v{vT0}, v{vT1}, 10, v{vT0}")
I("s_and_b32 s25, s3, 1")
I("s_lshl_b32 s25, s25, 13")
I("s_bfe_u32 s26, s3, 0x10001")
I("s_lshl_b32 s26, s26, 7")
I("s_add_u32 s25, s25, s26")
I("s_lshr_b32 s26, s3, 2")
I("s_lshl_b32 s26, s26, 14")
I("s_add_u32 s25, s25, s26")
I(f"s_add_u32 s25, s25, {XS}")
I(f"v_add_u32 v{vT0}, s25, v{vT0}")
I(f"s_waitcnt vmcnt({NG+len(PFM)})")
for s in range(4):
    cc = "0" if s==0 else f"v[{MACC}:{MACC+15}]"
    I(f"v_mfma_f32_32x32x16_bf16 v[{MACC}:{MACC+15}], v[{XO+4*s}:{XO+4*s+3}], v[{WO+4*s}:{WO+4*s+3}], {cc}")
I("s_cmp_ge_u32 s3, 4")
I("s_cbranch_scc1 K2_MMW")
I(f"s_mov_b32 s25, {hex(f32(LOG2E))}")
I(f"s_mov_b32 s26, {hex(NEG_LOG2E)}")
I("s_cmp_lg_u32 s31, 0")
I("s_cselect_b32 s25, s26, s25")
for r in range(16):
    I(f"v_mul_f32 v{MACC+r}, s25, v{MACC+r}")
I("s_cbranch_scc1 K2_MMW")
I(f"v_mov_b32 v{vT1}, 0")
for r in range(0,16,2):
    I(f"v_max3_f32 v{vT1}, abs(v{MACC+r}), abs(v{MACC+r+1}), v{vT1}")
for r in range(16):
    I(f"v_add_f32 v{MACC+r}, {hex(f32(float(SCL)))}, v{MACC+r}")
for r in range(16):
    I(f"v_exp_f32 v{MACC+r}, v{MACC+r}")
I(f"v_mov_b32 v{vT2}, {hex(f32(14.0))}")
I(f"v_cmp_nle_f32 vcc, v{vT1}, v{vT2}")
I("s_and_saveexec_b64 s[32:33], vcc")
I("s_cbranch_execz K2_NOBAD1")
I(f"v_mov_b32 v{vT2}, 0")
I(f"v_mov_b32 v{vT1}, 1")
I(f"ds_write_b32 v{vT2}, v{vT1} offset:{MISC+8}")
L("K2_NOBAD1")
I("s_mov_b64 exec, -1")
L("K2_MMW")
I("s_nop 7"); I("s_nop 3")
for r in range(16):
    I(f"ds_write_b32 v{vT0}, v{MACC+r} offset:{(8*(r//4)+(r%4))*256}")
I("s_branch K2_NOMM")
L("K2_FLCHK")
I(f"s_waitcnt vmcnt({NG+len(PFM)+{0:0,2:2,3:4,4:4,5:12}[PF]})")
I(f"v_cmp_ne_u32 vcc, 0, v{vFL}")
I("s_and_saveexec_b64 s[32:33], vcc")
I("s_cbranch_execz K2_NOBAD")
I(f"v_mov_b32 v{vT0}, 0")
I(f"v_mov_b32 v{vT1}, 1")
I(f"ds_write_b32 v{vT0}, v{vT1} offset:{MISC+8}")
L("K2_NOBAD")
I("s_mov_b64 exec, -1")
L("K2_NOMM")
I("s_waitcnt lgkmcnt(0)")
I("s_barrier")
L("K2_NOMM2")
I("s_cmp_eq_u32 s40, 0")
I("s_cbranch_scc1 K2_MDONE")

def pk(op,d,a,b,c=None,sel=None):
    s=f"v_pk_{op}_f32 v[{d}:{d+1}], v[{a}:{a+1}], v[{b}:{b+1}]"
    if c is not None: s+=f", v[{c}:{c+1}]"
    if sel: s+=" "+sel
    I(s)
def rd(q, off, safe, idx=True):
    for k in range(4):
        if idx: I(f"ds_read_u16 v{IDXR+2*k}, v{vLA} offset:{LIST+off+8*k}")
    I(f"ds_read_u16 v{NX[q]}, v{vLA} offset:{LIST+off+2}")
    if safe:
        for k in range(4):
            I(f"ds_read_b32 v{ER[q]+k}, v{vLA} offset:{LIST+off+8*k+4}")
    else:
        I(f"ds_read_b32 v{EV[q]}, v{vEA} offset:{LIST+off+4}")
def nrd(safe): return 9 if safe else 6
def rd_x(n):
    I(f"v_add_u32 v{vT0}, v{NX[n]}, v{vJ16}")
    I(f"v_add_u32 v{SA[n]}, v{NX[n]}, v{vSc}")
    I(f"ds_read_b128 v[{XR[n]}:{XR[n]+3}], v{vT0} offset:{XS}")
def aprep(n):
    e=EV[n]
    I(f"v_mul_f32 v{e}, s{sSC}, v{e}")
    I(f"v_mul_f32 v{vT1}, v{e}, v{e}")
    I(f"v_fma_f32 v{vT2}, v{vT1}, v{vM2}, v{vN2}")
    I(f"v_cndmask_b32 v{A1}, v{e}, v{vT1}, s[{KM1}:{KM1+1}]")
    I(f"v_mul_f32 v{vT1}, v{vT1}, v{vT1}")
    I(f"v_mul_f32 v{A1}, v{A1}, v{vT2}")
    I(f"v_mul_f32 v{A2}, v{A1}, v{vT1}")
    I(f"v_cvt_pkrtz_f16_f32 v{AP+1}, v{A1}, v{A2}")
    I(f"v_fma_mix_f32 v{A2}, v{AP+1}, -1.0, v{A1} op_sel_hi:[1,0,0]")
    I(f"v_cvt_pkrtz_f16_f32 v{AP}, v{A1}, v{A2}")
NMF=4
def mf(k):
    I(f"v_mfma_f32_16x16x16_f16 v[{F+4*k}:{F+4*k+3}], v[{AP}:{AP+1}], v[{vB+2*k}:{vB+2*k+1}], v[{CC}:{CC+3}]")
def compute_fast(p, lg, post=None):
    G=GS[p]; X=XR[p]
    if NOC:
        I(f"s_waitcnt lgkmcnt({lg})")
        for k in range(4): I(f"v_add_f32 v{AC+k}, v{G+4*k}, v{AC+k}")
        return
    if PK==0:
        d=lambda r,b: F+4*b+r
        H=lambda r,b: G+4*r+b
        for r in range(4):
            for b in range(4):
                I(f"v_fma_mix_f32 v{d(r,b)}, v{H(r,b)}, v{F+4*b+r}, v{X+b} op_sel_hi:[1,0,0]")
        seq=[lambda b: f"v_mul_f32 v{H(0,b)}, v{H(0,b)}, v{d(1,b)}",
             lambda b: f"v_mul_f32 v{H(2,b)}, v{H(2,b)}, v{d(3,b)}",
             lambda b: f"v_fmac_f32 v{H(0,b)}, v{H(1,b)}, v{d(0,b)}",
             lambda b: f"v_fmac_f32 v{H(2,b)}, v{H(3,b)}, v{d(2,b)}",
             lambda b: f"v_mul_f32 v{d(0,b)}, v{d(0,b)}, v{d(1,b)}",
             lambda b: f"v_mul_f32 v{d(2,b)}, v{d(2,b)}, v{d(3,b)}",
             lambda b: f"v_mul_f32 v{d(1,b)}, v{d(0,b)}, v{d(2,b)}",
             lambda b: f"v_rcp_f32 v{d(3,b)}, v{d(1,b)}",
             lambda b: f"v_mul_f32 v{H(0,b)}, v{H(0,b)}, v{d(2,b)}",
             lambda b: f"v_fmac_f32 v{H(0,b)}, v{H(2,b)}, v{d(0,b)}"]
        for f_ in seq:
            for b in range(4): I(f_(b))
        I(f"s_waitcnt lgkmcnt({lg})")
        for b in range(4): I(f"v_fmac_f32 v{AC+b}, v{H(0,b)}, v{d(3,b)}")
    else:
        if PK==3:
            for b in range(4):
                for r in range(4):
                    I(f"v_fma_mix_f32 v{T+4*r+b}, v{G+4*r+b}, v{F+4*b+r}, v{X+b} op_sel_hi:[1,0,0]")
                mf(b)
            if post: post()
        else:
          for r in range(4):
            for b in range(4):
                I(f"v_fma_mix_f32 v{T+4*r+b}, v{G+4*r+b}, v{F+4*b+r}, v{X+b} op_sel_hi:[1,0,0]")
        H=lambda k,a: G+4*k+2*a
        d=lambda k,a: T+4*k+2*a
        ops=[]
        seq=[lambda a: pk("mul", H(0,a), H(0,a), d(1,a)),
             lambda a: pk("mul", H(2,a), H(2,a), d(3,a)),
             lambda a: pk("fma", H(0,a), H(1,a), d(0,a), H(0,a)),
             lambda a: pk("fma", H(2,a), H(3,a), d(2,a), H(2,a)),
             lambda a: pk("mul", d(0,a), d(0,a), d(1,a)),
             lambda a: pk("mul", d(2,a), d(2,a), d(3,a)),
             lambda a: pk("mul", d(1,a), d(0,a), d(2,a)),
             lambda a: (I(f"v_rcp_f32 v{d(3,a)}, v{d(1,a)}"), I(f"v_rcp_f32 v{d(3,a)+1}, v{d(1,a)+1}")),
             lambda a: pk("mul", H(0,a), H(0,a), d(2,a)),
             lambda a: pk("fma", H(0,a), H(2,a), d(0,a), H(0,a))]
        km=0
        for i_,f_ in enumerate(seq):
            if PK==2 and km<NMF and (i_*NMF)//len(seq)>=km:
                mf(km); km+=1
            for a in range(2): f_(a)
        while PK==2 and km<NMF:
            mf(km); km+=1
        I(f"s_waitcnt lgkmcnt({lg})")
        for a in range(2): pk("fma", AC+2*a, H(0,a), d(3,a), AC+2*a)
def compute_safe(p, lg):
    G=GS[p]; X=XR[p]; Ev=ER[p]
    for r in range(4):
        for b in range(4):
            g=G+4*r+b; t=F+4*r+b; u=T+4*r+b
            I(f"v_cvt_f32_f16 v{t}, v{g}")
            I(f"v_and_b32 v{u}, 0x3fff, v{g}")
            I(f"v_or_b32 v{u}, 0x4000, v{u}")
            I(f"v_cvt_f32_f16 v{u}, v{u}")
            I(f"v_lshlrev_b32 v{vT1}, 17, v{g}")
            I(f"v_and_b32 v{vT1}, 0x80000000, v{vT1}")
            I(f"v_mul_f32 v{u}, 4.0, v{u}")
            I(f"v_xor_b32 v{u}, v{u}, v{vT1}")
            I(f"v_log_f32 v{t}, v{t}")
            I(f"v_and_b32 v{vT1}, 0x8000, v{g}")
            I(f"v_cmp_ne_u32 vcc, 0, v{vT1}")
            I(f"v_max_f32 v{t}, {hex(f32(-1e30))}, v{t}")
            I(f"v_cndmask_b32 v{t}, v{t}, v{u}, vcc")
            I(f"v_fmac_f32 v{t}, v{Ev+r}, v{vC+b}")
            I(f"v_add_f32 v{t}, v{t}, v{X+b}")
            I(f"v_exp_f32 v{t}, v{t}")
            I(f"v_add_f32 v{t}, 1.0, v{t}")
            I(f"v_rcp_f32 v{t}, v{t}")
    I(f"s_waitcnt lgkmcnt({lg})")
    for r in range(4):
        for b in range(4):
            I(f"v_fmac_f32 v{AC+b}, v{G+4*r+b}, v{F+4*r+b}")

def mainloop(tag, safe):
    L(f"K2_MAIN_{tag}")
    rd(0,0,safe,idx=False)
    if not safe:
        for i in range(4): I(f"v_mov_b32 v{CC+i}, {hex(f32(2.0**SCL))}")
        I(f"v_cndmask_b32 v{vM2}, 0, 4.0, s[{KM2}:{KM2+1}]")
        I(f"v_cndmask_b32 v{vN2}, 4.0, 0, s[{KM2}:{KM2+1}]")
    I("s_waitcnt lgkmcnt(0)")
    rd_x(0)
    rd(1,32,safe)
    if not safe:
        aprep(0)
        for k in range(NMF): mf(k)
    I(f"ds_read_b128 v[{AC}:{AC+3}], v{SA[0]} offset:{SLOT}")
    I(f"ds_read_b128 v[{AC}:{AC+3}], v{SA[0]} offset:{SLOT}")
    for half in range(2):
        p=half; n=1-half
        L(f"K2_IT_{tag}{half}")
        I("s_sub_u32 s40, s40, 1")
        I("s_cmp_eq_u32 s40, 0")
        I(f"s_cbranch_scc1 K2_TL_{tag}{half}")
        I("s_waitcnt lgkmcnt(2)")
        gather(n)
        L(f"K2_BD_{tag}{half}")
        rd_x(n)
        if safe:
            I("s_waitcnt vmcnt(4)")
            compute_safe(p, 1)
            rd(p, 64+32*half, safe)
        else:
            rd(p, 64+32*half, safe)
            aprep(n)
            I("s_waitcnt vmcnt(4)")
            compute_fast(p, 1+nrd(safe))
        if half==1:
            I(f"v_add_u32 v{vLA}, 64, v{vLA}")
            if not safe: I(f"v_add_u32 v{vEA}, 64, v{vEA}")
        I(f"ds_write_b128 v{SA[p]}, v[{AC}:{AC+3}] offset:{SLOT}")
        I("s_cmp_eq_u32 s40, 0")
        I(f"s_cbranch_scc1 K2_MDONE")
        I(f"ds_read_b128 v[{AC}:{AC+3}], v{SA[n]} offset:{SLOT}")
        if not safe and PK not in (2,3) and not NOC:
            for k in range(NMF): mf(k)
        if half==1:
            I(f"s_branch K2_IT_{tag}0")
    for half in range(2):
        L(f"K2_TL_{tag}{half}")
        I("s_waitcnt vmcnt(0) lgkmcnt(2)")
        I(f"s_branch K2_BD_{tag}{half}")

I("s_cmp_lg_u32 s31, 0")
I("s_cbranch_scc1 K2_MAIN_S")
mainloop("F", False)
mainloop("S", True)
L("K2_MDONE")
I("s_waitcnt lgkmcnt(0)")
if PROF!=2: TS()
I(f"v_lshrrev_b32 v40, 4, v0")
I(f"v_lshlrev_b32 v41, 2, v40")
I(f"ds_bpermute_b32 v42, v41, v{vNS}")
I(f"ds_bpermute_b32 v43, v41, v{vNQ}")
I("s_add_u32 s44, s42, 1")
I("s_max_u32 s45, s42, 1")
I("v_cvt_f32_u32 v44, s44")
I("v_cvt_f32_u32 v45, s45")
I("v_rcp_f32 v44, v44")
I("v_rcp_f32 v45, v45")
I("s_mul_i32 s25, s43, s44")
I("s_lshl_b32 s25, s25, 2")
I("s_lshl_b32 s26, s43, 2")
I(f"v_mul_f32 v44, {hex(f32(2.0**20))}, v44")
I(f"v_mul_f32 v45, {hex(f32(2.0**20))}, v45")
I("v_cvt_u32_f32 v44, v44")
I("v_cvt_u32_f32 v45, v45")
I("v_add_u32 v44, 2, v44")
I("v_add_u32 v45, 2, v45")
I("s_waitcnt lgkmcnt(0)")
I("v_add3_u32 v46, v42, v43, -1")
def gq(dst,q,t):
    I(f"v_mul_u32_u24 v{dst}, v{q}, v44")
    I(f"v_lshrrev_b32 v{dst}, 20, v{dst}")
    I(f"v_subrev_u32 v{t}, s25, v{q}")
    I(f"v_mul_u32_u24 v{t}, v{t}, v45")
    I(f"v_lshrrev_b32 v{t}, 20, v{t}")
    I(f"v_add_u32 v{t}, s26, v{t}")
    I(f"v_cmp_gt_u32 vcc, s25, v{q}")
    I(f"v_cndmask_b32 v{dst}, v{t}, v{dst}, vcc")
gq(47,42,48)
gq(49,46,48)
I("v_sub_u32 v49, v49, v47")
I("v_add_u32 v49, 1, v49")
I("v_cmp_ne_u32 vcc, 0, v43")
I("v_cndmask_b32 v49, 0, v49, vcc")
I("v_add_u32 v47, v47, v40")
I(f"v_lshl_add_u32 v47, v47, 8, v{vJ16}")
I(f"v_lshl_add_u32 v41, v40, 8, v{vJ16}")
I(f"ds_read_b128 v[64:67], v41 offset:{US}")
I(f"ds_read_b128 v[68:71], v41 offset:{XS}")
for i in range(12): I(f"v_mov_b32 v{52+i}, 0")
I("s_barrier")
if PROF!=2: TS()
I(f"v_mov_b32 v{vT0}, 0")
I(f"ds_read_b32 v{vT1}, v{vT0} offset:{MISC+8}")
L("K2_RED")
for i in range(3):
    I(f"v_cmp_lt_i32 vcc, {i}, v49")
    I("s_mov_b64 exec, vcc")
    I(f"ds_read_b128 v[{52+4*i}:{55+4*i}], v47 offset:{SLOT+256*i}")
I("s_mov_b64 exec, -1")
I("s_waitcnt lgkmcnt(0)")
pk("add",52,52,56); pk("add",54,54,58)
pk("add",vACC,vACC,60); pk("add",vACC+2,vACC+2,62)
pk("add",vACC,vACC,52); pk("add",vACC+2,vACC+2,54)
I("v_subrev_u32 v49, 3, v49")
I("v_cmp_lt_i32 vcc, 0, v49")
I("s_cbranch_vccz K2_REDONE")
I("v_add_u32 v47, 768, v47")
for i in range(12): I(f"v_mov_b32 v{52+i}, 0")
I("s_branch K2_RED")
L("K2_REDONE")
I(f"v_readfirstlane_b32 s37, v{vT1}")
I("s_andn2_b32 s37, s37, s31")
I("s_cmp_lg_u32 s37, 0")
I("s_cbranch_scc1 K2_GOSAFE")
I(f"s_add_u32 s34, s34, {CAP}")
I("s_cmp_lt_u32 s34, s36")
I("s_cbranch_scc1 K2_NEXTROUND")
I("s_cmp_eq_u32 s31, 0")
I("s_cbranch_scc1 K2_FIN")
for i in range(4): I(f"v_mov_b32 v{68+i}, 1.0")
L("K2_FIN")
for i in range(4):
    I(f"v_fma_f32 v{40+i}, v{vACC+i}, v{68+i}, v{64+i}")
for i in range(4):
    I(f"v_mul_f32 v{44+i}, {hex(NEG_LOG2E)}, v{40+i}")
for i in range(4):
    I(f"v_exp_f32 v{44+i}, v{44+i}")
for i in range(4):
    I(f"v_add_f32 v{44+i}, 1.0, v{44+i}")
for i in range(4):
    I(f"v_rcp_f32 v{44+i}, v{44+i}")
for i in range(4):
    I(f"v_mul_f32 v{40+i}, v{40+i}, v{44+i}")
I("v_cvt_pk_bf16_f32 v44, v40, v41")
I("v_cvt_pk_bf16_f32 v45, v42, v43")
I(f"v_lshlrev_b32 v{vT0}, 3, v0")
I(f"v_lshrrev_b32 v{vT1}, 4, v0")
I("s_lshl_b32 s25, s10, 7")
I(f"v_cmp_gt_u32 vcc, s11, v{vT1}")
I("s_and_b64 exec, exec, vcc")
I("s_cbranch_execz K2_END0")
I(f"buffer_store_dwordx2 v[44:45], v{vT0}, s[20:23], s25 offen")
L("K2_END0")
if PROF:
    I("s_waitcnt vmcnt(0)")
    if PROF!=2: TS()
    prof_end(1,8,3,"K2_END",ts_n[0])
L("K2_END")
I("s_endpgm")
L("K2_GOSAFE")
I("s_mov_b32 s31, 1")
I(f"v_lshrrev_b32 v{vT0}, 1, v{vJ16}")
I(f"v_add_u32 v{vT0}, 16384, v{vT0}")
I(f"global_load_dwordx2 v[{vC+2}:{vC+3}], v{vT0}, s[4:5]")
I("s_waitcnt vmcnt(0) lgkmcnt(0)")
I(f"v_lshlrev_b32 v{vC}, 16, v{vC+2}")
I(f"v_and_b32 v{vC+1}, 0xffff0000, v{vC+2}")
I(f"v_lshlrev_b32 v{vC+2}, 16, v{vC+3}")
I(f"v_and_b32 v{vC+3}, 0xffff0000, v{vC+3}")
for i in range(4):
    I(f"v_mul_f32 v{vC+i}, {hex(NEG_LOG2E)}, v{vC+i}")
I("s_barrier")
I("s_branch K2_RESTART")
L("K2_NEXTROUND")
I("s_barrier")
I("s_branch K2_ROUND")

def kd(name, vg, sg):
    out.append(f""".p2align 6
.amdhsa_kernel {name}
  .amdhsa_next_free_vgpr {vg}
  .amdhsa_next_free_sgpr {sg}
  .amdhsa_accum_offset {vg}
  .amdhsa_group_segment_fixed_size 0
  .amdhsa_kernarg_size 80
  .amdhsa_user_sgpr_count 2
  .amdhsa_user_sgpr_kernarg_segment_ptr 1
  .amdhsa_system_sgpr_workgroup_id_x 1
.end_amdhsa_kernel""")
out.append('.section .rodata,"a"')
kd("egc_bin_kernel",128,102 if PROF else 64)
kd("egc_main_kernel",128,102 if PROF else 80)
dst=sys.argv[1] if len(sys.argv)>1 else 'gather_scatter__edge_featured_mpnn_egc__graph.s'
open(dst,'w').write("\n".join(pad(out))+"\n")
```

```python
import sys
s=open(sys.argv[1]).read(); which=sys.argv[3]
k1=f"""    s_waitcnt vmcnt(0)
    s_memrealtime s[94:95]
    s_cmp_lg_u32 s2, 5
    s_cbranch_scc1 TS_ENDa
    s_cmp_lg_u32 s3, 0
    s_cbranch_scc1 TS_ENDa
    s_waitcnt lgkmcnt(0)
    s_add_u32 s90, s20, 0x2000000
    s_addc_u32 s91, s21, 0
    s_mov_b64 exec, 1
    v_mov_b32 v50, 0
    v_mov_b32 v52, s96
    v_mov_b32 v53, s94
    global_store_dwordx2 v50, v[52:53], s[90:91]
TS_ENDa:
"""
calc={'d1':"s_sub_u32 s92, s89, s88", 'g':"s_sub_u32 s92, s96, s88", 'd2':"s_sub_u32 s92, s94, s96", 'e1':"s_sub_u32 s92, s96, s89"}[which]
k2=f"""    s_waitcnt vmcnt(0)
    s_memrealtime s[94:95]
    s_cmp_lg_u32 s2, 5
    s_cbranch_scc1 TS_ENDb
    s_cmp_lg_u32 s3, 0
    s_cbranch_scc1 TS_ENDb
    s_add_u32 s90, s8, 0x2000000
    s_addc_u32 s91, s9, 0
    s_load_dwordx2 s[88:89], s[90:91], 0
    s_waitcnt lgkmcnt(0)
    {calc}
    s_min_u32 s92, s92, 5000
    s_lshl_b32 s92, s92, 3
TS_LP:
    s_memrealtime s[86:87]
    s_waitcnt lgkmcnt(0)
    s_sub_u32 s86, s86, s94
    s_cmp_lt_u32 s86, s92
    s_cbranch_scc1 TS_LP
TS_ENDb:
"""
s=s.replace("egc_bin_kernel:\n","egc_bin_kernel:\n    s_memrealtime s[96:97]\n",1)
s=s.replace("egc_main_kernel:\n","egc_main_kernel:\n    s_memrealtime s[96:97]\n",1)
s=s.replace("K1_BEND:\n","K1_BEND:\n"+k1,1)
s=s.replace("K2_END0:\n","K2_END0:\n"+k2,1)
s=s.replace("next_free_sgpr 80","next_free_sgpr 102")
open(sys.argv[2],'w').write(s)
```

```python
import sys
s=open(sys.argv[1]).read(); which=sys.argv[3]
k1=f"""    s_cmp_lg_u32 s3, 0
    s_cbranch_scc1 TS_ENDa
    s_waitcnt lgkmcnt(0)
    s_not_b32 s96, s96
    s_mov_b64 exec, 1
    v_mov_b32 v50, 0
    v_mov_b32 v52, s96
    global_atomic_umax v50, v52, s[98:99]
TS_ENDa:
"""
calc={'T':"s_sub_u32 s92, s94, s88", 'K':"s_sub_u32 s92, s94, s89", 'G':"s_sub_u32 s92, s89, s88"}[which]
k2=f"""    s_cmp_lg_u32 s3, 0
    s_cbranch_scc1 TS_ENDb
    s_waitcnt vmcnt(0) lgkmcnt(0)
    s_not_b32 s96, s96
    s_mov_b64 exec, 1
    v_mov_b32 v50, 0
    v_mov_b32 v52, s96
    v_mov_b32 v53, 1
    global_atomic_umax v54, v50, v52, s[98:99] offset:4 sc0
    s_waitcnt vmcnt(0)
    global_atomic_add v51, v50, v53, s[98:99] sc0
    s_waitcnt vmcnt(0)
    s_memrealtime s[94:95]
    v_readfirstlane_b32 s90, v51
    s_cmp_lg_u32 s90, 255
    s_cbranch_scc1 TS_ENDc
    v_mov_b32 v53, 0
    global_atomic_add v54, v50, v53, s[98:99] offset:4 sc0
    global_atomic_add v55, v50, v53, s[98:99] offset:-512 sc0
    s_waitcnt vmcnt(0) lgkmcnt(0)
    v_readfirstlane_b32 s89, v54
    v_readfirstlane_b32 s88, v55
    s_not_b32 s89, s89
    s_not_b32 s88, s88
    {calc}
    s_min_u32 s92, s92, 5000
    s_lshl_b32 s92, s92, 3
TS_LP:
    s_memrealtime s[86:87]
    s_waitcnt lgkmcnt(0)
    s_sub_u32 s86, s86, s94
    s_cmp_lt_u32 s86, s92
    s_cbranch_scc1 TS_LP
TS_ENDc:
    s_waitcnt lgkmcnt(0)
TS_ENDb:
"""
h="    s_memrealtime s[96:97]\n    s_load_dwordx2 s[98:99], s[0:1], 64\n"
s=s.replace("egc_bin_kernel:\n","egc_bin_kernel:\n"+h,1)
s=s.replace("egc_main_kernel:\n","egc_main_kernel:\n"+h,1)
s=s.replace("K1_BEND:\n","K1_BEND:\n"+k1,1)
s=s.replace("K2_END0:\n","K2_END0:\n"+k2,1)
s=s.replace("next_free_sgpr 80","next_free_sgpr 102")
open(sys.argv[2],'w').write(s)
```

```python
import sys
s=open(sys.argv[1]).read(); which=sys.argv[3]
amp=int(sys.argv[4]) if len(sys.argv)>4 else 3
k1=f"""    s_cmp_lg_u32 s3, 0
    s_cbranch_scc1 TS_ENDa
    s_waitcnt vmcnt(0)
    s_memrealtime s[94:95]
    s_add_u32 s90, s20, 0x2000000
    s_addc_u32 s91, s21, 0
    s_mov_b64 exec, 1
    s_lshl_b32 s92, s2, 3
    v_mov_b32 v50, s92
    s_waitcnt lgkmcnt(0)
    v_mov_b32 v52, s96
    v_mov_b32 v53, s94
    global_store_dwordx2 v50, v[52:53], s[90:91] sc0 sc1
    s_cmp_ge_u32 s2, 6
    s_cbranch_scc1 TS_ENDa
    global_store_dwordx2 v50, v[52:53], s[90:91] offset:2000 sc0 sc1
TS_ENDa:
"""
calc={'T':"s_sub_u32 s92, s80, s83", 'K':"s_sub_u32 s92, s82, s83", 'G':"s_sub_u32 s92, s80, s82", 'E':"s_sub_u32 s92, s81, s82", 'D':"s_sub_u32 s92, s80, s81"}[which]
red=""
for l in range(64):
    red+=f"""    v_readlane_b32 s84, v60, {l}
    v_readlane_b32 s85, v61, {l}
    v_readlane_b32 s86, v62, {l}
    v_readlane_b32 s87, v63, {l}
    s_max_u32 s80, s80, s84
    s_min_u32 s81, s81, s85
    s_max_u32 s82, s82, s86
    s_min_u32 s83, s83, s87
"""
sub=""
for r in range(16): sub+=f"    v_sub_u32 v{64+r}, s93, v{64+r}\n"
k2=f"""TS_BLK:
    s_cmp_lg_u32 s3, 0
    s_cbranch_scc1 TS_ENDb
    s_waitcnt vmcnt(0)
    s_memrealtime s[94:95]
    s_add_u32 s90, s8, 0x2000000
    s_addc_u32 s91, s9, 0
    s_mov_b64 exec, 1
    s_lshl_b32 s92, s2, 3
    v_mov_b32 v50, s92
    s_waitcnt lgkmcnt(0)
    v_mov_b32 v52, s96
    v_mov_b32 v53, s94
    global_store_dwordx2 v50, v[52:53], s[90:91] offset:2048 sc0 sc1
    v_mov_b32 v50, 0
    v_mov_b32 v53, 1
    s_waitcnt vmcnt(0)
    global_atomic_add v51, v50, v53, s[98:99] sc0
    s_waitcnt vmcnt(0)
    v_readfirstlane_b32 s88, v51
    s_cmp_lg_u32 s88, 255
    s_cbranch_scc1 TS_ENDb
    s_mov_b64 exec, -1
    v_and_b32 v50, 63, v0
    v_lshlrev_b32 v50, 5, v50
    global_load_dwordx4 v[64:67], v50, s[90:91] sc0 sc1
    global_load_dwordx4 v[68:71], v50, s[90:91] offset:16 sc0 sc1
    global_load_dwordx4 v[72:75], v50, s[90:91] offset:2048 sc0 sc1
    global_load_dwordx4 v[76:79], v50, s[90:91] offset:2064 sc0 sc1
    s_add_u32 s93, s94, 0x10000
    s_waitcnt vmcnt(0)
{sub}    v_max_u32 v60, v64, v66
    v_max3_u32 v60, v60, v68, v70
    v_min_u32 v61, v65, v67
    v_min3_u32 v61, v61, v69, v71
    v_max_u32 v62, v72, v74
    v_max3_u32 v62, v62, v76, v78
    v_min_u32 v63, v73, v75
    v_min3_u32 v63, v63, v77, v79
    s_mov_b32 s80, 0
    s_mov_b32 s81, -1
    s_mov_b32 s82, 0
    s_mov_b32 s83, -1
    s_nop 4
{red}    {calc}
    s_min_u32 s92, s92, 5000
    s_lshl_b32 s92, s92, {amp}
    s_memrealtime s[94:95]
    s_sub_u32 s84, s80, s83
    s_sub_u32 s85, s82, s83
    s_sub_u32 s86, s80, s82
    s_sub_u32 s87, s80, s81
    s_mov_b64 exec, 1
    v_mov_b32 v50, 0
    v_mov_b32 v52, s84
    v_mov_b32 v53, s85
    v_mov_b32 v54, s86
    v_mov_b32 v55, s87
    global_store_dwordx4 v50, v[52:55], s[98:99] offset:16
    s_waitcnt lgkmcnt(0)
TS_LP:
    s_memrealtime s[86:87]
    s_waitcnt lgkmcnt(0)
    s_sub_u32 s86, s86, s94
    s_cmp_lt_u32 s86, s92
    s_cbranch_scc1 TS_LP
TS_ENDb:
    s_endpgm
"""
h="    s_memrealtime s[96:97]\n"
s=s.replace("egc_bin_kernel:\n","egc_bin_kernel:\n"+h,1)
s=s.replace("egc_main_kernel:\n","egc_main_kernel:\n"+h+"    s_load_dwordx2 s[98:99], s[0:1], 64\n",1)
s=s.replace("K1_BEND:\n","K1_BEND:\n"+k1,1)
s=s.replace("K2_END0:\n","K2_END0:\n    s_branch TS_BLK\n",1)
i=s.index('.section .rodata')
s=s[:i]+k2+s[i:]
s=s.replace("next_free_sgpr 80","next_free_sgpr 102")
open(sys.argv[2],'w').write(s)
```

```python
import sys
s=open(sys.argv[1]).read(); which=sys.argv[3]
amp=int(sys.argv[4]) if len(sys.argv)>4 else 3
k1=f"""    s_cmp_lg_u32 s3, 0
    s_cbranch_scc1 TS_ENDa
    s_add_u32 s90, s20, 0x2010000
    s_addc_u32 s91, s21, 0
    s_mov_b64 exec, 1
    s_lshl_b32 s92, s2, 7
    v_mov_b32 v50, s92
    s_waitcnt lgkmcnt(0)
    v_mov_b32 v52, s96
    v_mov_b32 v53, s96
    global_store_dwordx2 v50, v[52:53], s[90:91] sc0 sc1
    s_cmp_ge_u32 s2, 6
    s_cbranch_scc1 TS_ENDa
    v_add_u32 v50, 32000, v50
    global_store_dwordx2 v50, v[52:53], s[90:91] sc0 sc1
TS_ENDa:
"""
calc={'T':"s_sub_u32 s92, s80, s83", 'K':"s_sub_u32 s92, s82, s83", 'G':"s_sub_u32 s92, s80, s82", 'E':"s_sub_u32 s92, s81, s82", 'D':"s_sub_u32 s92, s80, s81"}[which]
red=""
for l in range(64):
    red+=f"""    v_readlane_b32 s84, v60, {l}
    v_readlane_b32 s85, v61, {l}
    v_readlane_b32 s86, v62, {l}
    v_readlane_b32 s87, v63, {l}
    s_max_u32 s80, s80, s84
    s_min_u32 s81, s81, s85
    s_max_u32 s82, s82, s86
    s_min_u32 s83, s83, s87
"""
sub=""
for r in range(16): sub+=f"    v_sub_u32 v{64+r}, s93, v{64+r}\n"
k2=f"""TS_BLK:
    s_cmp_lg_u32 s3, 0
    s_cbranch_scc1 TS_ENDb
    s_waitcnt vmcnt(0)
    s_memrealtime s[94:95]
    s_add_u32 s90, s8, 0x2000000
    s_addc_u32 s91, s9, 0
    s_mov_b64 exec, 1
    s_lshl_b32 s92, s2, 3
    v_mov_b32 v50, s92
    s_waitcnt lgkmcnt(0)
    v_mov_b32 v52, s96
    v_mov_b32 v53, s94
    global_store_dwordx2 v50, v[52:53], s[90:91] offset:2048 sc0 sc1
    v_mov_b32 v50, 0
    v_mov_b32 v53, 1
    s_waitcnt vmcnt(0)
    global_atomic_add v51, v50, v53, s[98:99] sc0
    s_waitcnt vmcnt(0)
    v_readfirstlane_b32 s88, v51
    s_cmp_lg_u32 s88, 255
    s_cbranch_scc1 TS_ENDb
    s_mov_b64 exec, -1
    v_and_b32 v50, 63, v0
    v_lshlrev_b32 v50, 5, v50
    v_lshlrev_b32 v51, 4, v50
    v_add_u32 v51, 0x10000, v51
    global_load_dwordx2 v[64:65], v51, s[90:91] sc0 sc1
    global_load_dwordx2 v[66:67], v51, s[90:91] offset:128 sc0 sc1
    global_load_dwordx2 v[68:69], v51, s[90:91] offset:256 sc0 sc1
    global_load_dwordx2 v[70:71], v51, s[90:91] offset:384 sc0 sc1
    global_load_dwordx4 v[72:75], v50, s[90:91] offset:2048 sc0 sc1
    global_load_dwordx4 v[76:79], v50, s[90:91] offset:2064 sc0 sc1
    s_add_u32 s93, s94, 0x10000
    s_waitcnt vmcnt(0)
{sub}    v_max_u32 v60, v64, v66
    v_max3_u32 v60, v60, v68, v70
    v_min_u32 v61, v65, v67
    v_min3_u32 v61, v61, v69, v71
    v_max_u32 v62, v72, v74
    v_max3_u32 v62, v62, v76, v78
    v_min_u32 v63, v73, v75
    v_min3_u32 v63, v63, v77, v79
    s_mov_b32 s80, 0
    s_mov_b32 s81, -1
    s_mov_b32 s82, 0
    s_mov_b32 s83, -1
    s_nop 4
{red}    {calc}
    s_min_u32 s92, s92, 5000
    s_lshl_b32 s92, s92, {amp}
    s_memrealtime s[94:95]
    s_sub_u32 s84, s80, s83
    s_sub_u32 s85, s82, s83
    s_sub_u32 s86, s80, s82
    s_sub_u32 s87, s80, s81
    s_mov_b64 exec, 1
    v_mov_b32 v50, 0
    v_mov_b32 v52, s84
    v_mov_b32 v53, s85
    v_mov_b32 v54, s86
    v_mov_b32 v55, s87
    global_store_dwordx4 v50, v[52:55], s[98:99] offset:16
    s_waitcnt lgkmcnt(0)
TS_LP:
    s_memrealtime s[86:87]
    s_waitcnt lgkmcnt(0)
    s_sub_u32 s86, s86, s94
    s_cmp_lt_u32 s86, s92
    s_cbranch_scc1 TS_LP
TS_ENDb:
    s_endpgm
"""
h="    s_memrealtime s[96:97]\n"
s=s.replace("egc_bin_kernel:\n","egc_bin_kernel:\n"+h,1)
s=s.replace("egc_main_kernel:\n","egc_main_kernel:\n"+h+"    s_load_dwordx2 s[98:99], s[0:1], 64\n",1)
s=s.replace("K1_BEND:\n","K1_BEND:\n"+k1,1)
s=s.replace("K2_END0:\n","K2_END0:\n    s_branch TS_BLK\n",1)
i=s.index('.section .rodata')
s=s[:i]+k2+s[i:]
s=s.replace("next_free_sgpr 80","next_free_sgpr 102")
open(sys.argv[2],'w').write(s)
```

```python
import sys
s=open(sys.argv[1]).read()
s=s.replace("; @launch kernel=egc_bin_kernel","; @launch kernel=egc_pre_kernel grid=(250,1,1) block=(64,1,1) lds=0\n; @launch kernel=egc_bin_kernel",1)
k0=""".globl egc_pre_kernel
.p2align 8
.type egc_pre_kernel,@function
egc_pre_kernel:
    s_memrealtime s[96:97]
    s_load_dwordx2 s[20:21], s[0:1], 72
    s_cmp_lg_u32 s2, 5
    s_cbranch_scc1 TS_END0
    s_waitcnt lgkmcnt(0)
    s_add_u32 s90, s20, 0x2000000
    s_addc_u32 s91, s21, 0
    s_mov_b64 exec, 1
    v_mov_b32 v50, 0
    v_mov_b32 v52, s96
    global_store_dword v50, v52, s[90:91] offset:128
TS_END0:
    s_endpgm
"""
k1=f"""    s_cmp_lg_u32 s2, 5
    s_cbranch_scc1 TS_ENDa
    s_cmp_lg_u32 s3, 0
    s_cbranch_scc1 TS_ENDa
    s_waitcnt lgkmcnt(0)
    s_add_u32 s90, s20, 0x2000000
    s_addc_u32 s91, s21, 0
    s_mov_b64 exec, 1
    v_mov_b32 v50, 0
    v_mov_b32 v52, s96
    global_store_dword v50, v52, s[90:91]
TS_ENDa:
"""
calc={'p':"s_sub_u32 s92, s88, s89",'g':"s_sub_u32 s92, s96, s88",'0':"s_mov_b32 s92, 0"}[sys.argv[3]]
k2=f"""    s_waitcnt vmcnt(0)
    s_memrealtime s[94:95]
    s_cmp_lg_u32 s2, 5
    s_cbranch_scc1 TS_ENDb
    s_cmp_lg_u32 s3, 0
    s_cbranch_scc1 TS_ENDb
    s_add_u32 s90, s8, 0x2000000
    s_addc_u32 s91, s9, 0
    s_load_dword s88, s[90:91], 0
    s_load_dword s89, s[90:91], 128
    s_waitcnt lgkmcnt(0)
    {calc}
    s_min_u32 s92, s92, 5000
    s_lshl_b32 s92, s92, 3
TS_LP:
    s_memrealtime s[86:87]
    s_waitcnt lgkmcnt(0)
    s_sub_u32 s86, s86, s94
    s_cmp_lt_u32 s86, s92
    s_cbranch_scc1 TS_LP
TS_ENDb:
"""
s=s.replace("egc_bin_kernel:\n","egc_bin_kernel:\n    s_memrealtime s[96:97]\n",1)
s=s.replace("egc_main_kernel:\n","egc_main_kernel:\n    s_memrealtime s[96:97]\n",1)
s=s.replace("K1_BEND:\n","K1_BEND:\n"+k1,1)
s=s.replace("K2_END0:\n","K2_END0:\n"+k2,1)
s=s.replace("next_free_sgpr 80","next_free_sgpr 102")
i=s.index('.section .rodata')
s=s[:i]+k0+s[i:]
s+=""".p2align 6
.amdhsa_kernel egc_pre_kernel
  .amdhsa_next_free_vgpr 64
  .amdhsa_next_free_sgpr 102
  .amdhsa_accum_offset 64
  .amdhsa_group_segment_fixed_size 0
  .amdhsa_kernarg_size 80
  .amdhsa_user_sgpr_count 2
  .amdhsa_user_sgpr_kernarg_segment_ptr 1
  .amdhsa_system_sgpr_workgroup_id_x 1
.end_amdhsa_kernel
"""
open(sys.argv[2],'w').write(s)
```

```python
import sys,re,subprocess
src,dst,pt=sys.argv[1:4]
subprocess.run(["python3","mkt.py",src,dst,"D"],check=True)
s=open(dst).read()
st="    s_memrealtime s[94:95]\n"
def after(pat,ins):
    global s
    assert pat in s, pat
    s=s.replace(pat,pat+ins,1)
if pt=='b1': after("    s_waitcnt vmcnt(5)\n",st)
if pt=='bb': after("    buffer_load_dwordx2 v[26:27], v4, s[32:35], s43 offen",'\n'+st[:-1])
if pt=='bk': after("    ds_write_b32 v6, v5 offset:164\n    s_waitcnt lgkmcnt(0)\n",st)
if pt=='bi': after("    ds_write_b32 v6, v5 offset:164\n",st)
if pt=='bd': after("    s_mov_b32 s35, 0x20000\n",st)
if pt=='b2': after("    s_cbranch_vccnz K1_SPIN\n",st)
if pt=='bs': after("K1_OVD:\n",st)
if pt=='b3': after("K1_BEND:\n","    s_waitcnt vmcnt(0)\n"+st)
if pt=='b0': after("K1_BEND:\n","    s_waitcnt lgkmcnt(0)\n    s_mov_b32 s94, s96\n")
if pt=='t0': after("K1_TABLE:\n",st)
if pt=='t1': after("    s_cbranch_vccnz K1_TSP\n",st)
if pt=='t2p': s=s.replace("K1_TW2:\n",st+"K1_TW2:\n",1)
if pt=='t2': after("    s_cbranch_vccnz K1_TW2\n",st)
if pt[0]=='b':
    s=s.replace("    v_mov_b32 v53, s96\n","    v_mov_b32 v53, s94\n",1)
else:
    old="    global_store_dwordx2 v50, v[52:53], s[90:91] sc0 sc1\n    s_cmp_ge_u32 s2, 6\n"
    assert old in s
    s=s.replace(old,"""    global_store_dword v50, v52, s[90:91] sc0 sc1
    s_cmp_lt_u32 s2, 196
    s_cbranch_scc1 TS_NB
    global_store_dword v50, v53, s[90:91] offset:4 sc0 sc1
TS_NB:
    s_cmp_ge_u32 s2, 6
""",1)
    after("K1_TFLAG:\n",("    s_waitcnt vmcnt(0)\n"+st if pt=='t3' else "")+"""    s_cmp_lg_u32 s3, 8
    s_cbranch_scc1 TS_ENDt
    s_add_u32 s90, s20, 0x2010000
    s_addc_u32 s91, s21, 0
    s_mov_b64 exec, 1
    s_lshl_b32 s92, s2, 7
    v_mov_b32 v50, s92
    s_waitcnt lgkmcnt(0)
    v_mov_b32 v53, s94
    global_store_dword v50, v53, s[90:91] offset:4 sc0 sc1
TS_ENDt:
""")
open(dst,'w').write(s)
```
